```python
import torch

def _softmax(x, axis=-1):
    return torch.softmax(x, dim=axis)
def _gelu(x):
    return torch.nn.functional.gelu(x, approximate="tanh")
def _silu(x):
    return torch.nn.functional.silu(x)
def _sigmoid(x):
    return torch.sigmoid(x)
def _layernorm(x, axis=-1, eps=1e-5):
    m = x.mean(dim=axis, keepdim=True)
    v = x.var(dim=axis, keepdim=True, unbiased=False)
    return (x - m) / torch.sqrt(v + eps)
def _scatter_add(tgt, idx, src, axis=0):
    return tgt.clone().index_add_(axis, idx, src)
def _segment_sum(src, seg, n):
    out = torch.zeros((n,) + src.shape[1:], dtype=src.dtype)
    return out.index_add_(0, seg, src)
def _pad(x, pw):
    flat = tuple(v for pair in reversed(pw) for v in pair)
    return torch.nn.functional.pad(x, flat)

kernel_name = 'parallel_sum__gqa_block_cached__swiglu_ffn__decode'

def setup_inputs():

    _w = (lambda a: (lambda t: t.to(torch.bfloat16) if t.is_floating_point() else t)(torch.as_tensor(a)))
    def _A_setup():
        B, Sq, D = 1, 1, 576
        Hq, Hkv, Sk, Dh = 32, 16, 16384, 128
        assert Hq % Hkv == 0, (Hq, Hkv)
        return {
            "x": _w((lambda *s: torch.randn(*s, dtype=torch.bfloat16) * 0.05)(B, Sq, D)),
            "k_cache": _w((lambda *s: torch.randn(*s, dtype=torch.bfloat16) * 3.2)(B, Hkv, Sk, Dh)),
            "v_cache": _w((lambda *s: torch.randn(*s, dtype=torch.bfloat16) * 1.6)(B, Hkv, Sk, Dh)),
            "wq": _w((lambda *s: torch.randn(*s, dtype=torch.bfloat16) * 3.2)(D, Hq * Dh) * (D ** -0.5)),
            "wo": _w((lambda *s: torch.randn(*s, dtype=torch.bfloat16) * 1.6)(Hq * Dh, D) * ((Hq * Dh) ** -0.5)),
        }
    _A_in = _A_setup()

    def _B_setup():
        B, S, D, F = 1, 1, 576, 4608
        return {
            "x": _w((lambda *s: torch.randn(*s, dtype=torch.bfloat16) * 0.05)(B, S, D)),
            "w_gate": _w((lambda *s: torch.randn(*s, dtype=torch.bfloat16) * 0.05)(D, F)),
            "w_up": _w((lambda *s: torch.randn(*s, dtype=torch.bfloat16) * 0.05)(D, F)),
            "w_down": _w((lambda *s: torch.randn(*s, dtype=torch.bfloat16) * 0.05)(F, D)),
        }
    _B_in = _B_setup()

    return {
        "A_x": _A_in["x"],
        "A_k_cache": _A_in["k_cache"],
        "A_v_cache": _A_in["v_cache"],
        "A_wq": _A_in["wq"],
        "A_wo": _A_in["wo"],
        "B_x": _B_in["x"],
        "B_w_gate": _B_in["w_gate"],
        "B_w_up": _B_in["w_up"],
        "B_w_down": _B_in["w_down"],
    }

def reference(A_x, A_k_cache, A_v_cache, A_wq, A_wo, B_x, B_w_gate, B_w_up, B_w_down):
    def _A_ref(x, k_cache, v_cache, wq, wo):
        B, Sq, D = x.shape
        Hq, Dh = 32, 128
        Hkv = k_cache.shape[1]
        rep = Hq // Hkv
        q = (lambda x, *d: x.permute(*d))((x @ wq).reshape(B, Sq, Hq, Dh), 0, 2, 1, 3)
        k = (lambda x, n, axis: torch.repeat_interleave(x, n, dim=axis))(k_cache, rep, axis=1)
        v = (lambda x, n, axis: torch.repeat_interleave(x, n, dim=axis))(v_cache, rep, axis=1)
        scores = torch.einsum("bhqd,bhkd->bhqk", q, k) * (Dh ** -0.5)
        p = _softmax(scores, axis=-1)
        o = torch.einsum("bhqk,bhkd->bhqd", p, v)
        return (lambda x, *d: x.permute(*d))(o, 0, 2, 1, 3).reshape(B, Sq, Hq * Dh) @ wo

    def _B_ref(x, w_gate, w_up, w_down):
        g = _silu(x @ w_gate)
        u = x @ w_up
        return (g * u) @ w_down

    x = A_x
    xn = _layernorm(x, axis=-1)
    return x + _A_ref(xn, A_k_cache, A_v_cache, A_wq, A_wo) + _B_ref(xn, B_w_gate, B_w_up, B_w_down)
```

```python
import re

TRANS = ("v_exp_f32","v_log_f32","v_rcp_f32","v_rsq_f32","v_sqrt_f32","v_sin_f32","v_cos_f32")

def regs_of(tok):
    tok = tok.strip()
    tok = tok.lstrip("-").replace("abs(","").replace(")","").replace("|","")
    m = re.fullmatch(r"([vsa])(\d+)", tok)
    if m: return {(m.group(1), int(m.group(2)))}
    m = re.fullmatch(r"([vsa])\[(\d+):(\d+)\]", tok)
    if m: return {(m.group(1), i) for i in range(int(m.group(2)), int(m.group(3))+1)}
    if tok == "vcc": return {("s",106),("s",107)}
    if tok == "exec": return {("s",126),("s",127)}
    return set()

class Ins:
    def __init__(s, text):
        s.text = text
        t = text.split(";")[0].strip()
        s.label = None; s.op = None
        s.w = set(); s.r = set(); s.srcC=set(); s.srcAB=set(); s.data=set()
        if t.endswith(":"):
            s.label = t[:-1]; return
        if not t or t.startswith("."): return
        parts = t.split(None,1)
        s.op = parts[0]
        rest = parts[1] if len(parts)>1 else ""
        ops = [x.strip() for x in re.split(r",(?![^\[]*\])", rest)]
        if ops:
            ops[-1] = ops[-1].split()[0] if ops[-1] else ""
        s.ops = ops
        op = s.op
        s.valu = op.startswith("v_") and not op.startswith("v_mfma")
        s.mfma = op.startswith("v_mfma")
        s.vmem = op.startswith(("buffer_","global_"))
        s.ds = op.startswith("ds_")
        s.dpp = "_dpp" in op
        s.trans = op.replace("_e32","").replace("_e64","") in TRANS
        s.dot = op.startswith("v_dot")
        s.perml = op.startswith("v_permlane")
        s.rdlane = op.startswith(("v_readlane","v_readfirstlane"))
        s.store = "store" in op or op.startswith("ds_write")
        s.branch = op.startswith(("s_branch","s_cbranch"))
        R = [regs_of(o) for o in ops]
        if s.mfma:
            s.w = R[0]; s.srcAB = R[1]|R[2]; s.srcC = R[3]; s.r = s.srcAB|s.srcC
        elif s.perml:
            s.w = R[0]|R[1]; s.r = R[0]|R[1]
        elif s.valu:
            s.w = set(R[0]); s.r = set().union(*R[1:]) if len(R)>1 else set()
            if op.startswith(("v_dot2c","v_fmac")) : s.r |= R[0]; s.srcC = R[0]
            if op.startswith("v_dot2_"): s.srcC = R[3]
            if s.dot: s.srcAB = R[1]|R[2]
            if s.dpp: s.r |= R[0]
            if op.startswith(("v_add_co","v_addc_co","v_sub_co")): s.w |= R[1]
        elif s.vmem:
            if "store" in op:
                if op.startswith("buffer_"): s.data = R[0]
                else: s.data = R[1]
                s.r = set().union(*R)
            else:
                s.w = set(R[0]); s.r = set().union(*R[1:])
        elif s.ds:
            if op.startswith("ds_write"): s.r = set().union(*R)
            else: s.w = set(R[0]); s.r = set().union(*R[1:])
        elif op.startswith("s_"):
            if op.startswith(("s_cmp","s_waitcnt","s_nop","s_barrier","s_branch","s_cbranch","s_endpgm","s_sleep","s_setprio","s_bitcmp")):
                s.r = set().union(*R) if R else set()
            else:
                s.w = set(R[0]); s.r = set().union(*R[1:]) if len(R)>1 else set()
    def states(s):
        if s.op is None: return 0
        if s.op == "s_nop": return int(s.ops[0],0)+1
        return 1

def isv(x): return {r for r in x if r[0] in "va"}
def iss(x): return {r for r in x if r[0]=="s"}

def need(p, c):
    n = 0
    if p.op is None or c.op is None: return 0
    pv = isv(p.w)
    if p.valu:
        if c.valu and c.dpp and pv & c.r: n = max(n,2)
        if c.mfma and pv & c.r: n = max(n,2)
        if c.valu and c.perml and pv & c.r: n = max(n,2)
        if c.valu and c.rdlane and pv & c.r: n = max(n,1)
        if p.trans and (c.valu or c.mfma) and pv & c.r: n = max(n,1)
        if p.trans and (c.vmem or c.ds) and pv & c.r: n = max(n,1)
        if p.dot:
            if c.op == p.op:
                if pv & c.srcAB: n = max(n,3)
            elif pv & (c.r | c.w): n = max(n,3)
        ps = iss(p.w)
        if ps:
            if (c.valu or c.mfma) and ps & c.r: n = max(n, 4 if c.rdlane else 2)
            if c.vmem and ps & c.r: n = max(n,5)
            if not (c.valu or c.mfma or c.vmem) and ps & c.r: n = max(n,1)
    if p.mfma:
        if c.mfma:
            if c.srcC == p.w and c.op == p.op: pass
            elif pv & c.srcC: n = max(n,6)
            if pv & c.srcAB: n = max(n,8)
            if pv & c.w and not (c.srcC == p.w): n = max(n,8)
        elif pv & (c.r | c.w): n = max(n,8)
        if c.valu and isv(p.srcC) & c.w: n = max(n,3)
    if p.vmem and p.data and len(p.data)>=3:
        if (c.valu or c.mfma) and p.data & c.w: n = max(n,2)
        elif p.data & c.w: n = max(n,1)
    return n

def pad(lines):
    ins = [Ins(l) for l in lines]
    out = []
    MAXW = 9
    for _ in range(4):
        labels = {x.label:i for i,x in enumerate(ins) if x.label}
        preds = {}
        for i,x in enumerate(ins):
            if x.op and x.branch:
                preds.setdefault(x.ops[0],[]).append(i)
        changed = False
        i = 0
        new = []
        def lack(c, idx, dist, seen):
            worst = 0
            j = idx-1
            while j>=0 and dist < MAXW:
                p = ins[j]
                if p.label:
                    for b in preds.get(p.label,[]):
                        if (b,dist) not in seen:
                            seen.add((b,dist))
                            worst = max(worst, lack(c, b, dist+1, seen))
                    j -= 1
                    continue
                if p.op in ("s_branch","s_endpgm"):
                    return worst
                worst = max(worst, need(p,c)-dist)
                dist += p.states()
                j -= 1
            return worst
        k = 0
        while k < len(ins):
            c = ins[k]
            if c.op:
                l = lack(c, k, 0, set())
                if l>0:
                    ins.insert(k, Ins(f"s_nop {l-1}"))
                    changed = True
                    preds = {}
                    for i2,x in enumerate(ins):
                        if x.op and x.branch:
                            preds.setdefault(x.ops[0],[]).append(i2)
                    k += 1
            k += 1
        if not changed: break
    return [x.text for x in ins]

class VM:
    def __init__(s, emit):
        s.emit = emit; s.n = 0; s.done = 0
    def clone(s, emit=None):
        o = VM(emit or s.emit); o.n = s.n; o.done = s.done; return o
    def issue(s, text):
        s.emit(text); s.n += 1; return s.n
    def wait(s, i):
        if i <= s.done: return
        c = s.n - i
        assert c <= 63
        s.emit(f"s_waitcnt vmcnt({c})"); s.done = i
    def pace(s, D):
        if s.n - (D-1) > s.done: s.wait(s.n-(D-1))
    def drain(s):
        s.emit("s_waitcnt vmcnt(0)"); s.done = s.n
```

```python
import sys, struct
from asmlib import pad, VM

KNAME = "parallel_sum__gqa_block_cached__swiglu_ffn__decode"
def f2u(x): return struct.unpack("<I", struct.pack("<f", x))[0]
HDR = open("cdna_kernels/%s.s.ref" % KNAME).read().split("; Override launch")[0]

WS_QGU = 0x1000
WS_ML  = 0x10000
WS_OP  = 0x20000
WS_P2  = 0x80000
WS_SIZE = 0x120000
OOB = 0x7ff00000
SPIN = 1<<17

def gen(path, D=8, De=8, Dl=10, P=32, R=36, G=4, sub=4, budget=40, stamps=False, lds=90000,
        codepf=True, mlstep=36, hstep=20, outflags="", name=KNAME, dbg=False):
    L = []
    A = L.append
    def AA(s):
        for x in s.strip().split("\n"): A(x.strip())
    nv = [1]
    def V(n=1, al=1):
        b = (nv[0]+al-1)//al*al; nv[0] = b+n; return b
    vL = 0
    vKV = V(); vST = V(); vMK = V()
    SEL = V(8,4); A0 = V(4,4); A1 = V(4,4); ACC = V(4,4); LACC = V(12,4); Q = V(8,4)
    S = V(32,4); T = V(16,4); KT = V(8,4); PT = V(4,4)
    vMX = V(); vSL = V(); HP = V(3); vFA = V(); vA1 = V(); vA2 = V()
    RING = V(4*R,4)
    assert nv[0] <= 256, nv[0]
    NV = (nv[0]+7)//8*8
    def v(i,n=1): return f"v{i}" if n==1 else f"v[{i}:{i+n-1}]"
    sW,sWV,sH,sS = 2,3,4,5
    rK,rV,rST,rLT,rWS,rX,rO = 8,12,16,20,24,28,32
    sT = 36
    sE = 40; sOFF = 41; sSTR = 42; sA,sB,sC,sD_ = 43,44,45,46; sCNT = 47; sTAG=48
    sM0,sM1 = 49,50; sSO = 51
    sSTAMP = 52
    pX,pK,pV,pWQ,pWO,pG,pU,pD,pO,pDBG,pWS = 64,66,68,70,72,76,78,80,82,84,86
    def s(i,n=1): return f"s{i}" if n==1 else f"s[{i}:{i+n-1}]"
    def srd(d,p,n): AA(f"s_mov_b32 s{d}, s{p}\ns_mov_b32 s{d+1}, s{p+1}\ns_mov_b32 s{d+2}, {n}\ns_mov_b32 s{d+3}, 0x20000")
    nst=[0]
    def stamp(k):
        if stamps: A(f"s_memrealtime s[{sSTAMP+2*k}:{sSTAMP+2*k+1}]")
    OUTL = []
    vm = VM(A)

    A(f"{name}_kernel:")
    AA(f"""s_cmp_ge_u32 s2, 256
    s_cbranch_scc1 L_end
    s_load_dwordx16 s[64:79], s[0:1], 0
    s_load_dwordx8 s[80:87], s[0:1], 64""")
    stamp(0)
    t0,t1,t2,t3 = T,T+1,T+2,T+3
    AA(f"""v_lshrrev_b32 v{t0}, 6, v0
    v_lshrrev_b32 v{t1}, 3, v0
    v_readfirstlane_b32 s{sWV}, v{t0}
    v_and_b32 v{vL}, 63, v0
    s_and_b32 s{sH}, s2, 15
    s_lshr_b32 s{sS}, s2, 4
    v_and_b32 v{t2}, 7, v0
    v_mul_u32_u24 v{vA1}, 36, v{t1}
    v_lshlrev_b32 v{vA2}, 4, v{vL}
    v_lshlrev_b32 v{t3}, 2, v{vL}""")
    AA(f"""s_lshl_b32 s{sA}, s{sH}, 2
    s_add_u32 s{sA}, s{sA}, s{sS}
    s_sub_u32 s{sB}, s2, 64
    s_sub_u32 s{sC}, s2, 136
    s_cmp_ge_u32 s2, 136
    s_cselect_b32 s{sB}, s{sC}, s{sB}
    s_cmp_lt_u32 s2, 64
    s_cselect_b32 s{sB}, s{sA}, s{sB}
    s_cselect_b32 s{sSO}, s{sA}, s2
    s_movk_i32 s{sSTR}, 9216
    s_cselect_b32 s{sSTR}, 8192, s{sSTR}
    s_lshl_b32 s{sB}, s{sB}, 7
    s_mul_i32 s{sC}, s{sSTR}, 18
    v_mul_lo_u32 v{vST}, v{t1}, s{sC}
    v_lshl_add_u32 v{vST}, v{t2}, 4, v{vST}
    v_add_u32 v{vST}, s{sB}, v{vST}
    s_mul_i32 s{rST+2}, s{sSTR}, 576
    s_cmp_ge_u32 s2, 208
    s_cselect_b32 s{rST+2}, 0, s{rST+2}
    s_mov_b32 s{rST+3}, 0x20000
    s_mov_b32 s{rX+2}, 1152
    s_mov_b32 s{rX+3}, 0x20000
    s_mov_b32 s{sOFF}, 0
    s_waitcnt lgkmcnt(0)
    s_mov_b32 s{rX}, s{pX}
    s_mov_b32 s{rX+1}, s{pX+1}
    s_cmp_ge_u32 s2, 136
    s_cselect_b32 s{rST}, s{pU}, s{pG}
    s_cselect_b32 s{rST+1}, s{pU+1}, s{pG+1}
    s_cmp_lt_u32 s2, 64
    s_cselect_b32 s{rST}, s{pWQ}, s{rST}
    s_cselect_b32 s{rST+1}, s{pWQ+1}, s{rST+1}""")
    XS = T+4; XS4 = T+8
    XA = S+20
    idxs = vm.issue(f"buffer_load_dwordx4 {v(XS,4)}, v{vA2}, {s(rX,4)}, 0 offen")
    idxs = vm.issue(f"buffer_load_dword v{XS4}, v{t3}, {s(rX,4)}, 0 offen offset:1024")
    vm.issue(f"buffer_load_dwordx4 {v(XA,4)}, v{vA1}, {s(rX,4)}, 0 offen")
    vm.issue(f"buffer_load_dwordx4 {v(XA+4,4)}, v{vA1}, {s(rX,4)}, 0 offen offset:16")
    idxa = vm.issue(f"buffer_load_dword v{XA+8}, v{vA1}, {s(rX,4)}, 0 offen offset:32")
    A(f"s_load_dword s{sE}, {s(pWS,2)}, 0")

    loads = [("S",i) for i in range(18)] + [("K",i) for i in range(64)] + [("V",i) for i in range(64)]
    lid = {}
    def slot(n): return RING + 4*(n % R)
    lpos = {k:n for n,k in enumerate(loads)}
    def issue_load(n):
        kind,i = loads[n]
        r = slot(n)
        if kind=="S":
            lid[loads[n]] = vm.issue(f"buffer_load_dwordx4 {v(r,4)}, v{vST}, {s(rST,4)}, s{sOFF} offen nt")
            if i<17: A(f"s_add_u32 s{sOFF}, s{sOFF}, s{sSTR}")
        else:
            off = (i//G)*(sub*4*G*1024) + (i%G)*1024
            imm = off & 0xfff; so = off-imm
            if i==0 or so != issue_load.last:
                A(f"s_mov_b32 s{sOFF}, {so}")
            issue_load.last = so
            lid[loads[n]] = vm.issue(f"buffer_load_dwordx4 {v(r,4)}, v{vKV}, {s(rK if kind=='K' else rV,4)}, s{sOFF} offen offset:{imm} nt")
    issue_load.last = None

    tasks = []
    ids = {"xs":idxs, "xa":idxa}
    def task(body, need=(), frees=(), minstep=0, cost=None):
        if isinstance(body,str):
            lines = [x.strip() for x in body.strip().split("\n")]
            tasks.append(dict(fn=lambda lines=lines: [A(x) for x in lines], need=need, frees=frees, minstep=minstep, cost=cost or len(lines)))
        else:
            tasks.append(dict(fn=body, need=need, frees=frees, minstep=minstep, cost=cost or 8))
    def split_task(lines, n=16, need=(), **kw):
        for i in range(0,len(lines),n):
            task("\n".join(lines[i:i+n]), need=need, **kw)
    def allreduce(op, r, tmp, rows=True):
        o=[]
        if rows:
            for k in (8,4,2,1):
                o.append(f"{op}_dpp v{r}, v{r}, v{r} row_ror:{k} row_mask:0xf bank_mask:0xf")
        for sw in ("16","32"):
            o += [f"v_mov_b32 v{tmp}, v{r}", f"v_permlane{sw}_swap_b32 v{r}, v{tmp}", f"{op} v{r}, v{r}, v{tmp}"]
        return o
    def merge(*ls):
        o=[]; n=max(len(x) for x in ls)
        for i in range(n):
            for x in ls:
                if i<len(x): o.append(x[i])
        return o
    def bfr(d, x):
        return [f"v_cvt_pk_bf16_f32 v{d}, v{x}, v{x}", f"v_and_b32 v{d}, 0xffff0000, v{d}"]

    def setup1():
        srd(rK,pK,0x4000000); srd(rV,pV,0x4000000); srd(rWS,pWS,WS_SIZE)
        AA(f"""s_lshl_b32 s{sA}, s{sH}, 22
        s_and_b32 s{sB}, s{sS}, {sub-1}
        s_sub_u32 s{sC}, s{sS}, s{sB}
        s_lshl_b32 s{sC}, s{sC}, 18
        s_add_u32 s{sA}, s{sA}, s{sC}
        s_lshl_b32 s{sB}, s{sB}, 2
        s_add_u32 s{sB}, s{sB}, s{sWV}
        s_mul_i32 s{sB}, s{sB}, {G*1024}
        s_add_u32 s{sA}, s{sA}, s{sB}
        v_add_u32 v{vKV}, s{sA}, v{vA2}""")
        if codepf:
            AA(f"""s_getpc_b64 s[{sA+1}:{sA+2}]
            s_lshr_b32 s{sD_}, s2, 3
            s_lshl_b32 s{sD_}, s{sD_}, 10
            s_cmp_lt_u32 s{sD_}, L_end-{name}_kernel-2048
            s_cselect_b32 s{sD_}, s{sD_}, 0
            v_add_u32 v{PT}, s{sD_}, v{vA2}
            s_cmp_eq_u32 s{sWV}, 1
            s_cbranch_scc0 L_nopf
            global_load_dword v{PT+1}, v{PT}, s[{sA+1}:{sA+2}]
            L_nopf:""")
    task(setup1, cost=30, minstep=De-1)
    e=T+9; b0=T+10; b1=T+11; z=T+12
    sl = [f"v_and_b32 v{e}, 1, v{vL}", f"v_cmp_eq_u32 vcc, 0, v{e}",
          f"v_mov_b32 v{b0}, 0x0c0c0100", f"v_mov_b32 v{b1}, 0x0c0c0302", f"v_mov_b32 v{z}, 0x0c0c0c0c",
          f"v_mov_b32 v{SEL}, 0x01000c0c", f"v_mov_b32 v{SEL+1}, 0x03020c0c",
          f"v_cndmask_b32 v{b0}, v{SEL}, v{b0}, vcc", f"v_cndmask_b32 v{b1}, v{SEL+1}, v{b1}, vcc",
          f"v_bfe_u32 v{e}, v{vL}, 1, 2", f"v_mov_b32 v{vMK}, 0xffffff00"]
    for k in range(4):
        sl += [f"v_cmp_eq_u32 vcc, {k}, v{e}", f"v_cndmask_b32 v{SEL+k}, v{z}, v{b0}, vcc", f"v_cndmask_b32 v{SEL+4+k}, v{z}, v{b1}, vcc"]
    task("\n".join(sl))
    U = S
    ln=[]
    for k in range(5):
        ln += [f"v_lshlrev_b32 v{U+2*k}, 16, v{XS+k}", f"v_and_b32 v{U+2*k+1}, 0xffff0000, v{XS+k}"]
    m=S+10; tm=S+11; va=S+12; vb=S+13
    ln += [f"v_add_f32 v{m}, v{U}, v{U+1}", f"v_add_f32 v{tm}, v{U+2}, v{U+3}", f"v_add_f32 v{va}, v{U+4}, v{U+5}", f"v_add_f32 v{vb}, v{U+6}, v{U+7}",
           f"v_add_f32 v{m}, v{m}, v{tm}", f"v_add_f32 v{va}, v{va}, v{vb}", f"v_add_f32 v{tm}, v{U+8}, v{U+9}", f"v_add_f32 v{m}, v{m}, v{va}", f"v_add_f32 v{m}, v{m}, v{tm}"]
    ln += allreduce("v_add_f32", m, tm)
    ln += [f"v_mul_f32 v{m}, {hex(f2u(1/576))}, v{m}", f"v_cmp_gt_u32 vcc, 32, v{vL}"]
    for k in range(10): ln.append(f"v_sub_f32 v{U+k}, v{U+k}, v{m}")
    ln += [f"v_cndmask_b32 v{U+8}, 0, v{U+8}, vcc", f"v_cndmask_b32 v{U+9}, 0, v{U+9}, vcc"]
    ln += [f"v_mul_f32 v{va}, v{U}, v{U}", f"v_mul_f32 v{vb}, v{U+1}, v{U+1}"]
    for k in range(2,10,2): ln += [f"v_fmac_f32 v{va}, v{U+k}, v{U+k}", f"v_fmac_f32 v{vb}, v{U+k+1}, v{U+k+1}"]
    ln += [f"v_add_f32 v{va}, v{va}, v{vb}"]
    ln += allreduce("v_add_f32", va, tm)
    ln += [f"v_mul_f32 v{va}, {hex(f2u(1/576))}, v{va}"] + bfr(va,va) + bfr(m,m)
    ln += [f"v_add_f32 v{va}, {hex(f2u(1e-5))}, v{va}"] + bfr(va,va) + [f"v_sqrt_f32 v{va}, v{va}"] + bfr(va,va) + [f"v_rcp_f32 v{vb}, v{va}"]
    split_task(ln, 24, need=("xs",))
    XP = LACC
    for k in range(9):
        a,b,c,d = S,S+1,S+2,S+3
        task(f"""v_lshlrev_b32 v{a}, 16, v{XA+k}
        v_and_b32 v{b}, 0xffff0000, v{XA+k}
        v_sub_f32 v{a}, v{a}, v{m}
        v_sub_f32 v{b}, v{b}, v{m}
        v_cvt_pk_bf16_f32 v{b}, v{a}, v{b}
        v_lshlrev_b32 v{a}, 16, v{b}
        v_and_b32 v{b}, 0xffff0000, v{b}
        v_mul_f32 v{c}, v{a}, v{vb}
        v_mul_f32 v{d}, v{b}, v{vb}
        v_fma_f32 v{a}, -v{c}, v{va}, v{a}
        v_fma_f32 v{b}, -v{d}, v{va}, v{b}
        v_fmac_f32 v{c}, v{a}, v{vb}
        v_fmac_f32 v{d}, v{b}, v{vb}
        v_cvt_pk_bf16_f32 v{XP+k}, v{c}, v{d}""", need=("xa",))
    def abuild(dst, src, par): return [f"v_perm_b32 v{dst+k}, v{src}, v{src}, v{SEL+4*par+k}" for k in range(4)]
    def mfma(acc, a, b, first): return f"v_mfma_f32_16x16x32_bf16 {v(acc,4)}, {v(a,4)}, {v(b,4)}, {'0' if first else v(acc,4)}"
    AB = [A0,A1]
    task("\n".join(abuild(A0, XP, 0)))
    for i in range(18):
        o = abuild(AB[(i+1)&1], XP+(i+1)//2, (i+1)&1) if i<17 else []
        o = o[:2]+[mfma(ACC, AB[i&1], slot(lpos[("S",i)]), i==0)]+o[2:]
        task("\n".join(o), need=(("S",i),), frees=(("S",i),))
    def strip_pub():
        AA(f"""s_waitcnt lgkmcnt(0)
        s_and_b32 s{sA}, s{sE}, 0x7f7f7f7f
        s_add_u32 s{sA}, s{sA}, 0x2f573b1d
        s_and_b32 s{sB}, s{sE}, 0x80808080
        s_xor_b32 s{sTAG}, s{sA}, s{sB}
        s_and_b32 s{sT}, s{sTAG}, 0xff
        s_bfe_u32 s{sT+1}, s{sTAG}, 0x80008
        s_bfe_u32 s{sT+2}, s{sTAG}, 0x80010
        s_lshr_b32 s{sT+3}, s{sTAG}, 24
        s_lshl_b32 s{sA}, s{sWV}, 10
        v_add_u32 v{vA1}, s{sA}, v{vA2}
        ds_write_b128 v{vA1}, {v(ACC,4)}
        s_waitcnt lgkmcnt(0)
        s_barrier
        s_cmp_eq_u32 s{sWV}, 3
        s_cbranch_scc0 L_nostrip
        s_cmp_ge_u32 s2, 208
        s_cbranch_scc1 L_nostrip
        v_and_b32 v{T}, 1, v{vL}
        v_bfe_u32 v{T+1}, v{vL}, 1, 3
        v_lshlrev_b32 v{T}, 8, v{T}
        v_lshl_add_u32 v{T}, v{T+1}, 4, v{T}""")
        for p in range(4):
            A(f"ds_read_b128 {v(S+8*p,4)}, v{T} offset:{p*1024}")
            A(f"ds_read_b128 {v(S+8*p+4,4)}, v{T} offset:{p*1024+640}")
        AA(f"""s_lshl_b32 s{sA}, s{sSO}, 8
        s_add_u32 s{sA}, s{sA}, {WS_QGU}
        s_waitcnt lgkmcnt(0)""")
        for st in (4,8,16):
            for b in range(0,32,2*st):
                for k in (0,2):
                    A(f"v_pk_add_f32 {v(S+b+k,2)}, {v(S+b+k,2)}, {v(S+b+st+k,2)}")
        AA(f"""v_cvt_pk_bf16_f32 v{S+4}, v{S}, v{S+1}
        v_cvt_pk_bf16_f32 v{S+5}, v{S+2}, v{S+3}
        v_lshl_or_b32 v{S}, v{S+4}, 16, s{sT}
        v_and_b32 v{S+1}, 0xffff0000, v{S+4}
        v_lshl_or_b32 v{S+2}, v{S+5}, 16, s{sT+2}
        v_and_b32 v{S+3}, 0xffff0000, v{S+5}
        v_or_b32 v{S+1}, s{sT+1}, v{S+1}
        v_or_b32 v{S+3}, s{sT+3}, v{S+3}
        s_mov_b64 exec, 0xffff
        buffer_store_dwordx4 {v(S,4)}, v{vA2}, {s(rWS,4)}, s{sA} offen sc1
        s_mov_b64 exec, -1
        L_nostrip:""")
        stamp(1)
    task(strip_pub, cost=40)

    def check(regs, tags, acc, mask):
        o = [f"v_xor_b32 v{r}, {t}, v{r}" for r,t in zip(regs,tags)]
        rs = list(regs)
        o.append(f"v_or3_b32 v{acc}, v{rs[0]}, v{rs[1]}, v{rs[2]}"); rs = rs[3:]
        while len(rs)>=2:
            o.append(f"v_or3_b32 v{acc}, v{acc}, v{rs[0]}, v{rs[1]}"); rs = rs[2:]
        if rs: o.append(f"v_or_b32 v{acc}, v{acc}, v{rs[0]}")
        o += [f"v_and_b32 v{acc}, {mask}, v{acc}", f"v_cmp_ne_u32 vcc, 0, v{acc}"]
        return o
    def poll_pair(tagname, pre, lds_, regs, tags, acc, mask, minstep):
        def fissue():
            for x in pre: A(x)
            for x in lds_: ids[tagname] = vm.issue(x)
        task(fissue, minstep=minstep, cost=len(pre)+len(lds_))
        def fcheck():
            A(f"s_mov_b32 s{sCNT}, 0")
            A(f"L_{tagname}_chk:")
            for x in check(regs,tags,acc,mask): A(x)
            A(f"s_cbranch_vccnz L_{tagname}_retry")
            A(f"L_{tagname}_ok:")
            OUTL.extend([f"L_{tagname}_retry:", f"s_add_u32 s{sCNT}, s{sCNT}, 1", f"s_cmp_ge_u32 s{sCNT}, {SPIN}", f"s_cbranch_scc1 L_{tagname}_ok"]
                        + lds_ + ["s_waitcnt vmcnt(0)", f"s_branch L_{tagname}_chk"])
        return fcheck
    tg4 = [f"s{sT+k}" for k in range(4)]
    pre = [f"v_and_b32 v{vA1}, 15, v{vL}", f"v_lshlrev_b32 v{vA1}, 5, v{vA1}", f"v_and_b32 v{vST}, 8, v{vL}",
           f"v_lshl_add_u32 v{vA1}, v{vST}, 6, v{vA1}", f"v_xor_b32 v{vST}, 0x200, v{vA1}",
           f"s_lshl_b32 s{sSO}, s{sH}, 10", f"s_add_u32 s{sSO}, s{sSO}, {WS_QGU}"]
    lq = [f"buffer_load_dwordx4 {v(T,4)}, v{vA1}, {s(rWS,4)}, s{sSO} offen sc1",
          f"buffer_load_dwordx4 {v(T+4,4)}, v{vA1}, {s(rWS,4)}, s{sSO} offen offset:16 sc1",
          f"buffer_load_dwordx4 {v(T+8,4)}, v{vST}, {s(rWS,4)}, s{sSO} offen sc1",
          f"buffer_load_dwordx4 {v(T+12,4)}, v{vST}, {s(rWS,4)}, s{sSO} offen offset:16 sc1"]
    fc = poll_pair("q", pre, lq, list(range(T,T+16)), tg4*4, PT, "0xffff", 18+P-D+3)
    def fq():
        fc()
        A(f"s_mov_b32 s{sA}, 0x07060302")
        for k in range(8): A(f"v_perm_b32 v{Q+k}, v{T+2*k+1}, v{T+2*k}, s{sA}")
        A(f"v_mov_b32 v{vMX}, 0xff800000")
        stamp(2)
    task(fq, need=("q",), cost=40)
    SC = hex(f2u(128**-0.5))
    def kdots(n):
        o=[]; kt = KT+4*(n&1)
        r0 = slot(lpos[("K",2*n)]); r1 = slot(lpos[("K",2*n+1)])
        for k in range(4):
            for (acc,r,q) in ((kt,r0,Q),(kt+1,r0,Q+4),(kt+2,r1,Q),(kt+3,r1,Q+4)):
                o.append(f"v_dot2_f32_bf16 v{acc}, v{r+k}, v{q+k}, 0" if k==0 else f"v_dot2c_f32_bf16 v{acc}, v{r+k}, v{q+k}")
        return o
    def kpost(n):
        kt = KT+4*(n&1); a,b = kt,kt+2
        o=[]
        o += [f"v_add_f32_dpp v{x}, v{x+1}, v{x} row_ror:8 row_mask:0xf bank_mask:0xf" for x in (a,b)]
        for md in ("quad_perm:[1,0,3,2]","quad_perm:[2,3,0,1]","row_half_mirror"):
            o += [f"v_add_f32_dpp v{x}, v{x}, v{x} {md} row_mask:0xf bank_mask:0xf" for x in (a,b)]
        o += [f"v_cvt_pk_bf16_f32 v{a+1}, v{a}, v{b}", f"v_max3_f32 v{vMX}, v{vMX}, v{a}, v{b}",
              f"v_lshlrev_b32 v{a}, 16, v{a+1}", f"v_and_b32 v{b}, 0xffff0000, v{a+1}",
              f"v_mul_f32 v{a}, {SC}, v{a}", f"v_mul_f32 v{b}, {SC}, v{b}", f"v_cvt_pk_bf16_f32 v{S+n}, v{a}, v{b}"]
        return o
    for n in range(32):
        d = kdots(n)
        o = d if n==0 else d[:2]+merge(d[2:], kpost(n-1))
        task("\n".join(o), need=(("K",2*n),("K",2*n+1)), frees=(("K",2*n),("K",2*n+1)))
    LOG2E = hex(f2u(1.4426950408889634))
    o = kpost(31) + allreduce("v_max_f32", vMX, PT, rows=False) + bfr(vMX,vMX) + [f"v_mul_f32 v{vMX}, {SC}, v{vMX}"] + bfr(vMX,vMX)
    o += [f"v_mov_b32 v{vSL}, 0", f"v_mov_b32 v{PT+3}, 0"]
    task("\n".join(o))
    for n in range(0,32,2):
        o1=[];o2=[]
        for (oo,nn,a) in ((o1,n,KT),(o2,n+1,KT+2)):
            oo += [f"v_lshlrev_b32 v{a}, 16, v{S+nn}", f"v_and_b32 v{a+1}, 0xffff0000, v{S+nn}",
                   f"v_sub_f32 v{a}, v{a}, v{vMX}", f"v_sub_f32 v{a+1}, v{a+1}, v{vMX}",
                   f"v_mul_f32 v{a}, {LOG2E}, v{a}", f"v_mul_f32 v{a+1}, {LOG2E}, v{a+1}",
                   f"v_exp_f32 v{a}, v{a}", f"v_exp_f32 v{a+1}, v{a+1}",
                   f"v_add_f32 v{vSL}, v{vSL}, v{a}", f"v_add_f32 v{PT+3}, v{PT+3}, v{a+1}",
                   f"v_cvt_pk_bf16_f32 v{S+nn}, v{a}, v{a+1}"]
        task("\n".join(merge(o1,o2)), cost=26)
    def ml_pub():
        o = [f"v_add_f32 v{vSL}, v{vSL}, v{PT+3}"] + allreduce("v_add_f32", vSL, PT, rows=False)
        o += [f"v_readlane_b32 s{sM0}, v{vMX}, 0", f"v_readlane_b32 s{sM1}, v{vMX}, 8",
              f"v_mov_b32_dpp v{PT+3}, v{vSL} row_ror:8 row_mask:0xf bank_mask:0xf",
              f"v_mov_b32_dpp v{PT+2}, v{vMX} row_ror:8 row_mask:0xf bank_mask:0xf",
              f"v_and_or_b32 v{PT}, v{vMX}, v{vMK}, s{sT}", f"v_and_or_b32 v{PT+1}, v{vSL}, v{vMK}, s{sT+1}",
              f"v_and_or_b32 v{PT+2}, v{PT+2}, v{vMK}, s{sT+2}", f"v_and_or_b32 v{PT+3}, v{PT+3}, v{vMK}, s{sT+3}",
              f"s_lshl_b32 s{sSO}, s{sH}, 10", f"s_add_u32 s{sSO}, s{sSO}, {WS_ML}",
              f"s_lshl_b32 s{sA}, s{sS}, 2", f"s_add_u32 s{sA}, s{sA}, s{sWV}", f"s_lshl_b32 s{sA}, s{sA}, 4", f"s_add_u32 s{sA}, s{sA}, s{sSO}",
              "s_mov_b64 exec, 1"]
        for x in o: A(x)
        vm.issue(f"buffer_store_dwordx4 {v(PT,4)}, v{vA2}, {s(rWS,4)}, s{sA} offen sc1")
        A("s_mov_b64 exec, -1")
        stamp(3)
    task(ml_pub, cost=30)
    task("\n".join(abuild(A0, S, 0)))
    def vtask(i):
        o = abuild(AB[(i+1)&1], S+(i+1)//2, (i+1)&1) if i<63 else []
        o = o[:2]+[mfma(ACC, AB[i&1], slot(lpos[("V",i)]), i==0)]+o[2:]
        task("\n".join(o), need=(("V",i),), frees=(("V",i),))
    def side_h(vi):
        pre = [f"v_lshrrev_b32 v{vST}, 3, v{vL}", f"v_lshlrev_b32 v{vA1}, 4, v{vST}", f"v_and_b32 v{vST}, 3, v{vST}",
               f"v_lshlrev_b32 v{HP}, 3, v{vST}", f"v_lshrrev_b32 v{HP}, v{HP}, s{sTAG}" , f"v_and_b32 v{HP}, 0xff, v{HP}",
               f"v_lshlrev_b32 v{vST}, 2, v{vST}",
               f"s_and_b32 s{sA}, s2, 127", f"s_mul_i32 s{sA}, s{sA}, 144", f"s_add_u32 s{sC}, s{sA}, {WS_QGU+64*256}", f"s_add_u32 s{sD_}, s{sA}, {WS_QGU+136*256}"]
        pre[4] = f"v_lshrrev_b32_e64 v{HP}, v{HP}, s{sTAG}"
        lh = [f"buffer_load_dwordx4 {v(T,4)}, v{vA1}, {s(rWS,4)}, s{sC} offen sc1",
              f"buffer_load_dwordx4 {v(T+8,4)}, v{vA1}, {s(rWS,4)}, s{sD_} offen sc1",
              f"buffer_load_dword v{T+4}, v{vST}, {s(rWS,4)}, s{sC} offen offset:128 sc1",
              f"buffer_load_dword v{T+12}, v{vST}, {s(rWS,4)}, s{sD_} offen offset:128 sc1"]
        regs = [T,T+1,T+2,T+3,T+4,T+8,T+9,T+10,T+11,T+12]
        fc = poll_pair("h", pre, lh, regs, tg4+[f"v{HP}"]+tg4+[f"v{HP}"], PT, "0xffff", 0)
        def later():
            task(fc, need=("h",), cost=20)
            ls=[]
            for k in range(5):
                g=T+k; t=KT+k
                ls.append([f"v_mul_f32 v{t}, {hex(f2u(-1.4426950408889634))}, v{g}", f"v_exp_f32 v{t}, v{t}", f"v_add_f32 v{t}, 1.0, v{t}",
                           f"v_rcp_f32 v{t}, v{t}", f"v_mul_f32 v{t}, v{g}, v{t}"] + bfr(t,t) + [f"v_mul_f32 v{t}, v{t}, v{T+8+k}"])
            o = merge(*ls) + [f"v_cvt_pk_bf16_f32 v{HP}, v{KT}, v{KT+1}", f"v_cvt_pk_bf16_f32 v{HP+1}, v{KT+2}, v{KT+3}", f"v_cvt_pk_bf16_f32 v{HP+2}, v{KT+4}, v{KT+4}"]
            split_task(o, 22)
        return later
    def side_ml(vi):
        lm = [f"buffer_load_dwordx4 {v(T,4)}, v{vA2}, {s(rWS,4)}, s{sSO} offen sc1"]
        fc = poll_pair("ml", [], lm, [T,T+1,T+2,T+3], tg4, PT, "0xff", 0)
        def later():
            task(fc, need=("ml",), cost=12)
            M0,M1 = T+4,T+5
            o = [f"v_mov_b32 v{M0}, v{T}", f"v_mov_b32 v{M1}, v{T+2}"]
            o += merge(allreduce("v_max_f32",M0,T+6), allreduce("v_max_f32",M1,T+7))
            o += [f"v_sub_f32 v{T}, v{T}, v{M0}", f"v_sub_f32 v{T+2}, v{T+2}, v{M1}",
                  f"v_sub_f32 v{M0}, s{sM0}, v{M0}", f"v_sub_f32 v{M1}, s{sM1}, v{M1}",
                  f"v_mul_f32 v{T}, {LOG2E}, v{T}", f"v_mul_f32 v{T+2}, {LOG2E}, v{T+2}",
                  f"v_exp_f32 v{T}, v{T}", f"v_exp_f32 v{T+2}, v{T+2}", f"v_cmp_gt_u32 vcc, 32, v{vL}",
                  f"v_mul_f32 v{T}, v{T}, v{T+1}", f"v_mul_f32 v{T+2}, v{T+2}, v{T+3}",
                  f"v_cndmask_b32 v{M0}, v{M1}, v{M0}, vcc"]
            o += merge(allreduce("v_add_f32",T,T+6), allreduce("v_add_f32",T+2,T+7))
            o += [f"v_cmp_gt_u32 vcc, 32, v{vL}", f"v_mul_f32 v{M0}, {LOG2E}, v{M0}", f"v_exp_f32 v{M0}, v{M0}",
                  f"v_cndmask_b32 v{T}, v{T+2}, v{T}, vcc", f"v_rcp_f32 v{T}, v{T}", f"v_mul_f32 v{vFA}, v{M0}, v{T}"]
            split_task(o, 22)
        return later
    def side_late():
        def f():
            AA(f"""s_mul_i32 s{sA}, s2, {36*1152}
            s_lshl_b32 s{sB}, s{sH}, 3
            s_add_u32 s{sB}, s{sB}, s{sS}
            s_sub_u32 s{sB}, s{sB}, 8
            s_mul_i32 s{sB}, s{sB}, {32*1152}
            s_cmp_lt_u32 s2, 128
            s_cselect_b32 s{sA}, s{sA}, s{sB}
            s_cselect_b32 s{rLT}, s{pD}, s{pWO}
            s_cselect_b32 s{rLT+1}, s{pD+1}, s{pWO+1}
            s_mov_b32 s{rLT+2}, {4096*1152}
            s_cselect_b32 s{rLT+2}, {4608*1152}, s{rLT+2}
            s_mov_b32 s{rLT+3}, 0x20000
            s_mul_i32 s{sB}, s{sWV}, 384
            s_add_u32 s{sA}, s{sA}, s{sB}
            v_lshrrev_b32 v{T}, 3, v{vL}
            v_and_b32 v{T+1}, 7, v{vL}
            v_lshl_add_u32 v{T+2}, v{T+1}, 4, s{sA}
            v_mov_b32 v{T+3}, 4608
            v_mad_u32_u24 v{vST}, v{T}, v{T+3}, v{T+2}
            v_mov_b32 v{T+3}, 1152
            v_mad_u32_u24 v{vA1}, v{T}, v{T+3}, v{T+2}
            v_add_u32 v{vA1}, {32*1152}, v{vA1}
            v_cmp_gt_u32 vcc, 32, v{vL}
            v_mov_b32 v{T+3}, {OOB}
            v_cndmask_b32 v{vA1}, v{T+3}, v{vA1}, vcc""")
            srd(rO,pO,1152)
        task(f, cost=30)
    pend = {}
    for i in range(64):
        if i==hstep: pend[i+D+1] = side_h(i)
        if i==mlstep: pend[i+D+1] = side_ml(i)
        if i in pend: pend.pop(i)()
        if i==mlstep+D+2: side_late()
        vtask(i)
    assert not pend and hstep+D+1 < mlstep and mlstep+D+2 < 64-D-2

    state = dict(ti=0, freed=set())
    def needs_ok(t, vm_, force):
        for nd in t["need"]:
            i = ids[nd] if nd in ids else lid.get(nd)
            if i is None:
                assert not force, nd
                return False
            if i > vm_.done:
                if force: vm_.wait(i)
                else: return False
        return True
    def run_tasks(step, bud, until=None):
        while state["ti"] < len(tasks):
            t = tasks[state["ti"]]
            force = until is not None and until not in state["freed"]
            if not force:
                if bud <= 0 or t["minstep"] > step or not needs_ok(t, vm, False): break
            else:
                needs_ok(t, vm, True)
            t["fn"](); bud -= t["cost"]; state["ti"] += 1
            state["freed"].update(t["frees"])
    for n in range(len(loads)):
        if n >= R: run_tasks(n, 0, until=loads[n-R])
        vm.pace((De+5 if n < De else De) if n<18 else D)
        issue_load(n)
        run_tasks(n, budget)
    rest = tasks[state["ti"]:]
    assert all(len(t["frees"])==1 and t["frees"][0][0]=="V" for t in rest), "side jobs left in tail"
    stamp(4)
    NL = len(loads)
    vm0 = vm
    AA(f"""s_cmp_eq_u32 s{sWV}, 3
    s_cbranch_scc1 L_tail_w3
    s_cmp_lt_u32 s2, 128
    s_cbranch_scc1 L_tail_down""")
    def scale(): return [f"v_mul_f32 v{ACC+k}, v{ACC+k}, v{vFA}" for k in range(4)]
    def tail_late(role):
        vm = vm0.clone()
        ll = [(g,b) for g in range(4) for b in range(3)] + ([(4,b) for b in range(3)] if role=="down" else [])
        freed = set(state["freed"])
        lidl = {}
        k = [0]
        def issue_late():
            g,b = ll[k[0]]; n = NL+k[0]
            assert loads[n-R] in freed
            va,off = (vST, g*1152+b*128) if g<4 else (vA1, b*128)
            lidl[(g,b)] = (vm.issue(f"buffer_load_dwordx4 {v(slot(n),4)}, v{va}, {s(rLT,4)}, 0 offen offset:{off} nt"), slot(n))
            k[0]+=1
        def fill():
            while k[0] < len(ll) and vm.n - vm.done < Dl: issue_late()
        fill()
        for t in rest:
            vm.wait(lid[t["need"][0]]); fill(); t["fn"](); freed.update(t["frees"])
        P2V = KT; t0,t1,t2 = KT+1,KT+2,KT+3
        AA(f"""s_lshl_b32 s{sA}, s{sWV}, 10
        v_add_u32 v{t0}, s{sA}, v{vA2}""")
        for x in scale(): A(x)
        AA(f"""ds_write_b128 v{t0}, {v(ACC,4)} offset:4096
        s_waitcnt lgkmcnt(0)
        s_barrier""")
        while k[0] < len(ll):
            vm.pace(Dl); issue_late()
        p2 = f"""v_lshrrev_b32 v{t0}, 5, v{vL}
        v_bfe_u32 v{t1}, v{vL}, 3, 1
        v_lshl_or_b32 v{t0}, v{t1}, 1, v{t0}
        v_bfe_u32 v{t1}, v{vL}, 2, 1
        v_lshl_or_b32 v{t1}, v{t0}, 1, v{t1}
        v_cmp_gt_u32 vcc, 3, v{t0}
        v_and_b32 v{t0}, 3, v{vL}
        v_lshlrev_b32 v{t0}, 5, v{t0}
        v_and_or_b32 v{t0}, v{vL}, 16, v{t0}
        v_lshl_or_b32 v{t0}, v{t1}, 15, v{t0}
        v_mov_b32 v{t1}, {OOB}
        s_mul_i32 s{sA}, s{sWV}, {6*32768}
        s_lshl_b32 s{sB}, s2, 7
        s_add_u32 s{sA}, s{sA}, s{sB}
        s_add_u32 s{sA}, s{sA}, {WS_P2}
        v_cndmask_b32 v{P2V}, v{t1}, v{t0}, vcc"""
        if role=="wo":
            lo = [f"buffer_load_dwordx4 {v(T,4)}, v{vA1}, {s(rWS,4)}, s{sC} offen sc1",
                  f"buffer_load_dwordx4 {v(T+4,4)}, v{vA1}, {s(rWS,4)}, s{sD_} offen sc1"]
            AA(f"""v_and_b32 v{t0}, 7, v{vL}
            v_lshlrev_b32 v{t0}, 10, v{t0}
            v_lshrrev_b32 v{t1}, 3, v{vL}
            v_lshl_add_u32 v{vA1}, v{t1}, 4, v{t0}
            s_lshl_b32 s{sC}, s{sH}, 14
            s_lshl_b32 s{sD_}, s{sS}, 7
            s_add_u32 s{sC}, s{sC}, s{sD_}
            s_add_u32 s{sC}, s{sC}, {WS_OP-8*128}
            s_add_u32 s{sD_}, s{sC}, 8192
            s_mov_b32 s{sCNT}, 0""")
            for x in lo: A(x)
            AA(p2)
            AA(f"""s_branch L_o_wait
            L_o_retry:
            s_add_u32 s{sCNT}, s{sCNT}, 1
            s_cmp_ge_u32 s{sCNT}, {SPIN}
            s_cbranch_scc1 L_o_ok""")
            for x in lo: A(x)
            A("L_o_wait:")
            vm.drain()
            for x in check(list(range(T,T+8)), tg4*2, PT, "0xff"): A(x)
            AA(f"""v_pk_add_f32 {v(T,2)}, {v(T,2)}, {v(T+4,2)}
            v_pk_add_f32 {v(T+2,2)}, {v(T+2,2)}, {v(T+6,2)}
            s_cbranch_vccnz L_o_retry
            L_o_ok:""")
            for md in ("quad_perm:[1,0,3,2]","quad_perm:[2,3,0,1]","row_half_mirror"):
                for x in range(T,T+4): A(f"v_add_f32_dpp v{x}, v{x}, v{x} {md} row_mask:0xf bank_mask:0xf")
            AA(f"""v_cvt_pk_bf16_f32 v{HP}, v{T}, v{T+1}
            v_cvt_pk_bf16_f32 v{HP+1}, v{T+2}, v{T+3}""")
        else:
            AA(p2)
        ng = 5 if role=="down" else 4
        for x in abuild(A0, HP, 0): A(x)
        for g in range(ng):
            nx = abuild(AB[(g+1)&1], HP+(g+1)//2, (g+1)&1) if g+1<ng else []
            for b in range(3):
                i,r = lidl[(g,b)]
                if b==0 and nx: A(nx.pop(0)); A(nx.pop(0))
                vm.wait(i)
                A(mfma(LACC+4*b, AB[g&1], r, g==0))
                if nx: A(nx.pop(0))
        for k2 in range(4): A(f"v_permlane32_swap_b32 v{LACC+k2}, v{LACC+4+k2}")
        for k2 in range(4): A(f"v_permlane32_swap_b32 v{LACC+8+k2}, v{T+8+k2}")
        for k2 in range(4): A(f"v_add_f32_dpp v{LACC+k2}, v{LACC+4+k2}, v{LACC+k2} row_ror:8 row_mask:0xf bank_mask:0xf")
        for k2 in range(4): A(f"v_add_f32_dpp v{LACC+k2}, v{LACC+8+k2}, v{T+8+k2} row_ror:8 row_mask:0xf bank_mask:0xc")
        for k2 in range(4): A(f"v_and_or_b32 v{LACC+k2}, v{LACC+k2}, v{vMK}, s{sT+k2}")
        A(f"buffer_store_dwordx4 {v(LACC,4)}, v{P2V}, {s(rWS,4)}, s{sA} offen sc1")
        stamp(5)
        A("s_branch L_fin")
    tail_late("wo")
    A("L_tail_down:")
    tail_late("down")
    A("L_tail_w3:")
    vm = vm0.clone()
    XV = KT+4; OV = KT+5; CV = KT+6; PV = KT+7
    AA(f"""s_and_b32 s{sA}, s2, 7
    s_lshr_b32 s{sB}, s2, 6
    s_lshl_b32 s{sB}, s{sB}, 3
    s_add_u32 s{sM0}, s{sA}, s{sB}
    s_bfe_u32 s{sB}, s2, 0x30003
    s_lshl_b32 s{sC}, s{sM0}, 6
    s_lshl_b32 s{sD_}, s{sB}, 3
    s_add_u32 s{sC}, s{sC}, s{sD_}
    v_bfe_u32 v{KT}, v{vL}, 3, 1
    v_bfe_u32 v{KT+1}, v{vL}, 4, 1
    v_lshl_or_b32 v{KT}, v{KT}, 1, v{KT+1}
    v_lshl_add_u32 v{OV}, v{KT}, 1, s{sC}""")
    ix = vm.issue(f"buffer_load_ushort v{XV}, v{OV}, {s(rX,4)}, 0 offen")
    AA(f"""s_lshl_b32 s{sC}, s{sM0}, 15
    s_lshl_b32 s{sD_}, s{sB}, 4
    s_add_u32 s{sC}, s{sC}, s{sD_}
    s_add_u32 s{sC}, s{sC}, {WS_P2}
    v_lshl_add_u32 v{CV}, v{vL}, 7, s{sC}
    v_and_b32 v{KT}, 15, v{vL}
    v_lshlrev_b32 v{KT}, 5, v{KT}
    v_and_or_b32 v{KT}, v{vL}, 16, v{KT}
    v_lshrrev_b32 v{KT+1}, 5, v{vL}
    v_lshl_or_b32 v{PV}, v{KT+1}, 9, v{KT}
    s_lshl_b32 s{sA}, s{sH}, 4
    s_add_u32 s{sA}, s{sA}, s{sS}
    s_lshl_b32 s{sA}, s{sA}, 10
    s_add_u32 s{sA}, s{sA}, {WS_OP}
    s_mov_b32 s{sB}, 8192
    s_mov_b32 s{sC}, 16384
    s_mov_b32 s{sD_}, 24576""")
    for t in rest:
        vm.wait(lid[t["need"][0]]); t["fn"]()
    for x in scale(): A(x)
    if stamps: A("s_waitcnt lgkmcnt(0)")
    A("s_barrier")
    for p in range(3): A(f"ds_read_b128 {v(T+4*p,4)}, v{vA2} offset:{4096+p*1024}")
    A("s_waitcnt lgkmcnt(1)")
    for k2 in (0,2): A(f"v_pk_add_f32 {v(T+k2,2)}, {v(T+k2,2)}, {v(T+4+k2,2)}")
    A("s_waitcnt lgkmcnt(0)")
    for k2 in (0,2): A(f"v_pk_add_f32 {v(ACC+k2,2)}, {v(T+8+k2,2)}, {v(ACC+k2,2)}")
    for k2 in (0,2): A(f"v_pk_add_f32 {v(ACC+k2,2)}, {v(T+k2,2)}, {v(ACC+k2,2)}")
    for k2 in range(4): A(f"v_and_or_b32 v{ACC+k2}, v{ACC+k2}, v{vMK}, s{sT+k2}")
    A(f"buffer_store_dwordx4 {v(ACC,4)}, v{PV}, {s(rWS,4)}, s{sA} offen sc1")
    stamp(5)
    AA(f"""s_cmp_ge_u32 s{sM0}, 18
    s_cbranch_scc1 L_fin
    s_mov_b32 s{sCNT}, 0
    L_f_retry:
    s_add_u32 s{sCNT}, s{sCNT}, 1
    s_cmp_ge_u32 s{sCNT}, {SPIN}
    s_cbranch_scc1 L_f_ok""")
    for k2,so in enumerate(["0",f"s{sB}",f"s{sC}",f"s{sD_}"]):
        A(f"buffer_load_dwordx4 {v(T+4*k2,4)}, v{CV}, {s(rWS,4)}, {so} offen sc1")
    A("s_waitcnt vmcnt(0)")
    for x in check(list(range(T,T+16)), tg4*4, PT, "0xff"): A(x)
    for b in (0,8):
        for k2 in (0,2): A(f"v_pk_add_f32 {v(T+b+k2,2)}, {v(T+b+k2,2)}, {v(T+b+4+k2,2)}")
    AA(f"""s_cbranch_vccnz L_f_retry
    L_f_ok:""")
    for k2 in range(4): A(f"v_permlane32_swap_b32 v{T+k2}, v{T+8+k2}")
    for k2 in (0,2): A(f"v_pk_add_f32 {v(T+k2,2)}, {v(T+k2,2)}, {v(T+8+k2,2)}")
    AA(f"""v_lshlrev_b32 v{XV}, 16, v{XV}
    v_permlane16_swap_b32 v{T}, v{T+1}
    v_permlane16_swap_b32 v{T+2}, v{T+3}
    v_add_f32 v{T}, v{T}, v{T+1}
    v_add_f32 v{T+2}, v{T+2}, v{T+3}
    v_add_f32_dpp v{T}, v{T}, v{T} row_ror:8 row_mask:0xf bank_mask:0x3
    v_add_f32_dpp v{T}, v{T+2}, v{T+2} row_ror:8 row_mask:0xf bank_mask:0xc
    v_add_f32_dpp v{T}, v{T}, v{T} quad_perm:[1,0,3,2] row_mask:0xf bank_mask:0xf
    v_add_f32_dpp v{T}, v{T}, v{T} quad_perm:[2,3,0,1] row_mask:0xf bank_mask:0xf
    v_add_f32_dpp v{T}, v{T}, v{T} row_half_mirror row_mask:0xf bank_mask:0xf
    v_cvt_pk_bf16_f32 v{T}, v{T}, v{T}
    v_and_b32 v{T}, 0xffff0000, v{T}
    v_permlane32_swap_b32 v{T}, v{T+1}
    v_add_f32 v{T+1}, v{XV}, v{T+1}
    v_cvt_pk_bf16_f32 v{T+1}, v{T+1}, v{T+1}
    v_and_b32 v{T+1}, 0xffff0000, v{T+1}
    v_add_f32 v{T}, v{T}, v{T+1}
    v_cvt_pk_bf16_f32 v{T}, v{T}, v{T}
    s_mov_b64 exec, 0x01010101
    buffer_store_short v{T}, v{OV}, {s(rO,4)}, 0 offen {outflags}
    s_cmp_eq_u32 s2, 0
    s_cbranch_scc0 L_fin
    v_mov_b32 v{T+1}, s{sTAG}
    s_mov_b64 exec, 1
    buffer_store_dword v{T+1}, v{vA2}, {s(rWS,4)}, 0 offen sc1""")
    A("L_fin:")
    if stamps:
        AA(f"""s_memrealtime s[88:89]
        s_getreg_b32 s90, hwreg(HW_REG_XCC_ID)
        s_waitcnt lgkmcnt(0)
        s_mov_b64 exec, 1
        s_add_u32 s{pWS}, s{pWS}, 0x8000000
        s_addc_u32 s{pWS+1}, s{pWS+1}, 0
        s_lshl_b32 s{sA}, s2, 2
        s_add_u32 s{sA}, s{sA}, s{sWV}
        s_lshl_b32 s{sA}, s{sA}, 5
        v_mov_b32 v{KT}, s{sA}""")
        for k2 in range(6): A(f"v_mov_b32 v{S+k2}, s{sSTAMP+2*k2}")
        AA(f"""v_mov_b32 v{S+6}, s88
        v_mov_b32 v{S+7}, s90
        global_store_dwordx4 v{KT}, {v(S,4)}, {s(pWS,2)}
        global_store_dwordx4 v{KT}, {v(S+4,4)}, {s(pWS,2)} offset:16""")
    A("s_endpgm")
    for x in OUTL: A(x)
    A("L_end:")
    A("s_endpgm")
    body = pad(L)
    txt = HDR + f"; @launch grid=(256,1,1) block=(256,1,1) lds={lds}\n"
    txt += f""".amdgcn_target "amdgcn-amd-amdhsa--gfx950"
.text
.globl {name}_kernel
.p2align 8
.type {name}_kernel,@function
"""
    txt += "\n".join(x if x.endswith(":") else "    "+x for x in body)
    txt += f"""
.section .rodata,"a"
.p2align 6
.amdhsa_kernel {name}_kernel
  .amdhsa_next_free_vgpr {NV}
  .amdhsa_next_free_sgpr 96
  .amdhsa_accum_offset {NV}
  .amdhsa_group_segment_fixed_size 0
  .amdhsa_kernarg_size 96
  .amdhsa_user_sgpr_count 2
  .amdhsa_user_sgpr_kernarg_segment_ptr 1
  .amdhsa_system_sgpr_workgroup_id_x 1
  .amdhsa_float_denorm_mode_32 3
.end_amdhsa_kernel
"""
    open(path,"w").write(txt)

if __name__=="__main__":
    gen("v1.s")
    gen("v1_st.s", stamps=True)
```

```python
import sys, struct
from asmlib import pad, VM

KNAME = "parallel_sum__gqa_block_cached__swiglu_ffn__decode"
def f2u(x): return struct.unpack("<I", struct.pack("<f", x))[0]
HDR = open("cdna_kernels/%s.s.ref" % KNAME).read().split("; Override launch")[0]

WS_QGU = 0x1000
WS_ML  = 0x10000
WS_OP  = 0x20000
WS_P2  = 0x80000
WS_SIZE = 0x120000
OOB = 0x7ff00000
SPIN = 1<<17

def gen(path, D=8, De=8, Dl=10, P=32, R=36, G=4, sub=4, budget=40, stamps=False, lds=90000,
        codepf=True, mlstep=36, hstep=20, outflags="", name=KNAME, dbg=False, spin_us=0, ntf="nt"):
    L = []
    A = L.append
    def AA(s):
        for x in s.strip().split("\n"): A(x.strip())
    nv = [1]
    def V(n=1, al=1):
        b = (nv[0]+al-1)//al*al; nv[0] = b+n; return b
    vL = 0
    vKV = V(); vST = V(); vMK = V()
    SEL = V(8,4); A0 = V(4,4); A1 = V(4,4); ACC = V(4,4); LACC = V(12,4); Q = V(8,4)
    S = V(32,4); T = V(16,4); KT = V(8,4); PT = V(4,4)
    vMX = V(); vSL = V(); HP = V(3); vFA = V(); vA1 = V(); vA2 = V()
    RING = V(4*R,4)
    assert nv[0] <= 256, nv[0]
    NV = (nv[0]+7)//8*8
    def v(i,n=1): return f"v{i}" if n==1 else f"v[{i}:{i+n-1}]"
    sW,sWV,sH,sS = 2,3,4,5
    rK,rV,rST,rLT,rWS,rX,rO = 8,12,16,20,24,28,32
    sT = 36
    sE = 40; sOFF = 41; sSTR = 42; sA,sB,sC,sD_ = 43,44,45,46; sCNT = 47; sTAG=48
    sM0,sM1 = 49,50; sSO = 51
    sSTAMP = 52
    pX,pK,pV,pWQ,pWO,pG,pU,pD,pO,pDBG,pWS = 64,66,68,70,72,76,78,80,82,84,86
    def s(i,n=1): return f"s{i}" if n==1 else f"s[{i}:{i+n-1}]"
    def srd(d,p,n): AA(f"s_mov_b32 s{d}, s{p}\ns_mov_b32 s{d+1}, s{p+1}\ns_mov_b32 s{d+2}, {n}\ns_mov_b32 s{d+3}, 0x20000")
    nst=[0]
    def stamp(k):
        if stamps: A(f"s_memrealtime s[{sSTAMP+2*k}:{sSTAMP+2*k+1}]")
    OUTL = []
    vm = VM(A)

    A(f"{name}_kernel:")
    AA(f"""s_cmp_ge_u32 s2, 256
    s_cbranch_scc1 L_end
    s_load_dwordx16 s[64:79], s[0:1], 0
    s_load_dwordx8 s[80:87], s[0:1], 64""")
    stamp(0)
    if spin_us or dbg: A("s_memrealtime s[92:93]")
    t0,t1,t2,t3 = T,T+1,T+2,T+3
    AA(f"""v_lshrrev_b32 v{t0}, 6, v0
    v_lshrrev_b32 v{t1}, 3, v0
    v_readfirstlane_b32 s{sWV}, v{t0}
    v_and_b32 v{vL}, 63, v0
    s_and_b32 s{sH}, s2, 15
    s_lshr_b32 s{sS}, s2, 4
    v_and_b32 v{t2}, 7, v0
    v_mul_u32_u24 v{vA1}, 36, v{t1}
    v_lshlrev_b32 v{vA2}, 4, v{vL}
    v_lshlrev_b32 v{t3}, 2, v{vL}""")
    AA(f"""s_lshl_b32 s{sA}, s{sH}, 2
    s_add_u32 s{sA}, s{sA}, s{sS}
    s_sub_u32 s{sB}, s2, 64
    s_sub_u32 s{sC}, s2, 136
    s_cmp_ge_u32 s2, 136
    s_cselect_b32 s{sB}, s{sC}, s{sB}
    s_cmp_lt_u32 s2, 64
    s_cselect_b32 s{sB}, s{sA}, s{sB}
    s_cselect_b32 s{sSO}, s{sA}, s2
    s_movk_i32 s{sSTR}, 9216
    s_cselect_b32 s{sSTR}, 8192, s{sSTR}
    s_lshl_b32 s{sB}, s{sB}, 7
    s_mul_i32 s{sC}, s{sSTR}, 18
    v_mul_lo_u32 v{vST}, v{t1}, s{sC}
    v_lshl_add_u32 v{vST}, v{t2}, 4, v{vST}
    v_add_u32 v{vST}, s{sB}, v{vST}
    s_mul_i32 s{rST+2}, s{sSTR}, 576
    s_cmp_ge_u32 s2, 208
    s_cselect_b32 s{rST+2}, 0, s{rST+2}
    s_mov_b32 s{rST+3}, 0x20000
    s_mov_b32 s{rX+2}, 1152
    s_mov_b32 s{rX+3}, 0x20000
    s_mov_b32 s{sOFF}, 0
    s_waitcnt lgkmcnt(0)
    s_mov_b32 s{rX}, s{pX}
    s_mov_b32 s{rX+1}, s{pX+1}
    s_cmp_ge_u32 s2, 136
    s_cselect_b32 s{rST}, s{pU}, s{pG}
    s_cselect_b32 s{rST+1}, s{pU+1}, s{pG+1}
    s_cmp_lt_u32 s2, 64
    s_cselect_b32 s{rST}, s{pWQ}, s{rST}
    s_cselect_b32 s{rST+1}, s{pWQ+1}, s{rST+1}""")
    XS = T+4; XS4 = T+8
    XA = S+20
    idxs = vm.issue(f"buffer_load_dwordx4 {v(XS,4)}, v{vA2}, {s(rX,4)}, 0 offen")
    idxs = vm.issue(f"buffer_load_dword v{XS4}, v{t3}, {s(rX,4)}, 0 offen offset:1024")
    vm.issue(f"buffer_load_dwordx4 {v(XA,4)}, v{vA1}, {s(rX,4)}, 0 offen")
    vm.issue(f"buffer_load_dwordx4 {v(XA+4,4)}, v{vA1}, {s(rX,4)}, 0 offen offset:16")
    idxa = vm.issue(f"buffer_load_dword v{XA+8}, v{vA1}, {s(rX,4)}, 0 offen offset:32")
    A(f"s_load_dword s{sE}, {s(pWS,2)}, 0")

    loads = [("S",i) for i in range(18)] + [("K",i) for i in range(64)] + [("V",i) for i in range(64)]
    lid = {}
    def slot(n): return RING + 4*(n % R)
    lpos = {k:n for n,k in enumerate(loads)}
    def issue_load(n):
        kind,i = loads[n]
        r = slot(n)
        if kind=="S":
            lid[loads[n]] = vm.issue(f"buffer_load_dwordx4 {v(r,4)}, v{vST}, {s(rST,4)}, s{sOFF} offen {ntf}")
            if i<17: A(f"s_add_u32 s{sOFF}, s{sOFF}, s{sSTR}")
        else:
            off = (i//G)*(sub*4*G*1024) + (i%G)*1024
            imm = off & 0xfff; so = off-imm
            if i==0 or so != issue_load.last:
                A(f"s_mov_b32 s{sOFF}, {so}")
            issue_load.last = so
            lid[loads[n]] = vm.issue(f"buffer_load_dwordx4 {v(r,4)}, v{vKV}, {s(rK if kind=='K' else rV,4)}, s{sOFF} offen offset:{imm} {ntf}")
    issue_load.last = None

    tasks = []
    ids = {"xs":idxs, "xa":idxa}
    def task(body, need=(), frees=(), minstep=0, cost=None):
        if isinstance(body,str):
            lines = [x.strip() for x in body.strip().split("\n")]
            tasks.append(dict(fn=lambda lines=lines: [A(x) for x in lines], need=need, frees=frees, minstep=minstep, cost=cost or len(lines)))
        else:
            tasks.append(dict(fn=body, need=need, frees=frees, minstep=minstep, cost=cost or 8))
    def split_task(lines, n=16, need=(), **kw):
        for i in range(0,len(lines),n):
            task("\n".join(lines[i:i+n]), need=need, **kw)
    def allreduce(op, r, tmp, rows=True):
        o=[]
        if rows:
            for k in (8,4,2,1):
                o.append(f"{op}_dpp v{r}, v{r}, v{r} row_ror:{k} row_mask:0xf bank_mask:0xf")
        for sw in ("16","32"):
            o += [f"v_mov_b32 v{tmp}, v{r}", f"v_permlane{sw}_swap_b32 v{r}, v{tmp}", f"{op} v{r}, v{r}, v{tmp}"]
        return o
    def merge(*ls):
        o=[]; n=max(len(x) for x in ls)
        for i in range(n):
            for x in ls:
                if i<len(x): o.append(x[i])
        return o
    def bfr(d, x):
        return [f"v_cvt_pk_bf16_f32 v{d}, v{x}, v{x}", f"v_and_b32 v{d}, 0xffff0000, v{d}"]

    def setup1():
        srd(rK,pK,0x4000000); srd(rV,pV,0x4000000); srd(rWS,pWS,WS_SIZE)
        AA(f"""s_lshl_b32 s{sA}, s{sH}, 22
        s_and_b32 s{sB}, s{sS}, {sub-1}
        s_sub_u32 s{sC}, s{sS}, s{sB}
        s_lshl_b32 s{sC}, s{sC}, 18
        s_add_u32 s{sA}, s{sA}, s{sC}
        s_lshl_b32 s{sB}, s{sB}, 2
        s_add_u32 s{sB}, s{sB}, s{sWV}
        s_mul_i32 s{sB}, s{sB}, {G*1024}
        s_add_u32 s{sA}, s{sA}, s{sB}
        v_add_u32 v{vKV}, s{sA}, v{vA2}""")
        if codepf:
            AA(f"""s_getpc_b64 s[{sA+1}:{sA+2}]
            s_lshr_b32 s{sD_}, s2, 3
            s_lshl_b32 s{sD_}, s{sD_}, 10
            s_cmp_lt_u32 s{sD_}, L_end-{name}_kernel-2048
            s_cselect_b32 s{sD_}, s{sD_}, 0
            v_add_u32 v{PT}, s{sD_}, v{vA2}
            s_cmp_eq_u32 s{sWV}, 1
            s_cbranch_scc0 L_nopf
            global_load_dword v{PT+1}, v{PT}, s[{sA+1}:{sA+2}]
            L_nopf:""")
    task(setup1, cost=30, minstep=De-1)
    e=T+9; b0=T+10; b1=T+11; z=T+12
    sl = [f"v_and_b32 v{e}, 1, v{vL}", f"v_cmp_eq_u32 vcc, 0, v{e}",
          f"v_mov_b32 v{b0}, 0x0c0c0100", f"v_mov_b32 v{b1}, 0x0c0c0302", f"v_mov_b32 v{z}, 0x0c0c0c0c",
          f"v_mov_b32 v{SEL}, 0x01000c0c", f"v_mov_b32 v{SEL+1}, 0x03020c0c",
          f"v_cndmask_b32 v{b0}, v{SEL}, v{b0}, vcc", f"v_cndmask_b32 v{b1}, v{SEL+1}, v{b1}, vcc",
          f"v_bfe_u32 v{e}, v{vL}, 1, 2", f"v_mov_b32 v{vMK}, 0xffffff00"]
    for k in range(4):
        sl += [f"v_cmp_eq_u32 vcc, {k}, v{e}", f"v_cndmask_b32 v{SEL+k}, v{z}, v{b0}, vcc", f"v_cndmask_b32 v{SEL+4+k}, v{z}, v{b1}, vcc"]
    task("\n".join(sl))
    U = S
    ln=[]
    for k in range(5):
        ln += [f"v_lshlrev_b32 v{U+2*k}, 16, v{XS+k}", f"v_and_b32 v{U+2*k+1}, 0xffff0000, v{XS+k}"]
    m=S+10; tm=S+11; va=S+12; vb=S+13
    ln += [f"v_add_f32 v{m}, v{U}, v{U+1}", f"v_add_f32 v{tm}, v{U+2}, v{U+3}", f"v_add_f32 v{va}, v{U+4}, v{U+5}", f"v_add_f32 v{vb}, v{U+6}, v{U+7}",
           f"v_add_f32 v{m}, v{m}, v{tm}", f"v_add_f32 v{va}, v{va}, v{vb}", f"v_add_f32 v{tm}, v{U+8}, v{U+9}", f"v_add_f32 v{m}, v{m}, v{va}", f"v_add_f32 v{m}, v{m}, v{tm}"]
    ln += allreduce("v_add_f32", m, tm)
    ln += [f"v_mul_f32 v{m}, {hex(f2u(1/576))}, v{m}", f"v_cmp_gt_u32 vcc, 32, v{vL}"]
    for k in range(10): ln.append(f"v_sub_f32 v{U+k}, v{U+k}, v{m}")
    ln += [f"v_cndmask_b32 v{U+8}, 0, v{U+8}, vcc", f"v_cndmask_b32 v{U+9}, 0, v{U+9}, vcc"]
    ln += [f"v_mul_f32 v{va}, v{U}, v{U}", f"v_mul_f32 v{vb}, v{U+1}, v{U+1}"]
    for k in range(2,10,2): ln += [f"v_fmac_f32 v{va}, v{U+k}, v{U+k}", f"v_fmac_f32 v{vb}, v{U+k+1}, v{U+k+1}"]
    ln += [f"v_add_f32 v{va}, v{va}, v{vb}"]
    ln += allreduce("v_add_f32", va, tm)
    ln += [f"v_mul_f32 v{va}, {hex(f2u(1/576))}, v{va}"] + bfr(va,va) + bfr(m,m)
    ln += [f"v_add_f32 v{va}, {hex(f2u(1e-5))}, v{va}"] + bfr(va,va) + [f"v_sqrt_f32 v{va}, v{va}"] + bfr(va,va) + [f"v_rcp_f32 v{vb}, v{va}"]
    split_task(ln, 24, need=("xs",))
    XP = LACC
    for k in range(9):
        a,b,c,d = S,S+1,S+2,S+3
        task(f"""v_lshlrev_b32 v{a}, 16, v{XA+k}
        v_and_b32 v{b}, 0xffff0000, v{XA+k}
        v_sub_f32 v{a}, v{a}, v{m}
        v_sub_f32 v{b}, v{b}, v{m}
        v_cvt_pk_bf16_f32 v{b}, v{a}, v{b}
        v_lshlrev_b32 v{a}, 16, v{b}
        v_and_b32 v{b}, 0xffff0000, v{b}
        v_mul_f32 v{c}, v{a}, v{vb}
        v_mul_f32 v{d}, v{b}, v{vb}
        v_fma_f32 v{a}, -v{c}, v{va}, v{a}
        v_fma_f32 v{b}, -v{d}, v{va}, v{b}
        v_fmac_f32 v{c}, v{a}, v{vb}
        v_fmac_f32 v{d}, v{b}, v{vb}
        v_cvt_pk_bf16_f32 v{XP+k}, v{c}, v{d}""", need=("xa",))
    def abuild(dst, src, par): return [f"v_perm_b32 v{dst+k}, v{src}, v{src}, v{SEL+4*par+k}" for k in range(4)]
    def mfma(acc, a, b, first): return f"v_mfma_f32_16x16x32_bf16 {v(acc,4)}, {v(a,4)}, {v(b,4)}, {'0' if first else v(acc,4)}"
    AB = [A0,A1]
    task("\n".join(abuild(A0, XP, 0)))
    for i in range(18):
        o = abuild(AB[(i+1)&1], XP+(i+1)//2, (i+1)&1) if i<17 else []
        o = o[:2]+[mfma(ACC, AB[i&1], slot(lpos[("S",i)]), i==0)]+o[2:]
        task("\n".join(o), need=(("S",i),), frees=(("S",i),))
    def strip_pub():
        AA(f"""s_waitcnt lgkmcnt(0)
        s_and_b32 s{sA}, s{sE}, 0x7f7f7f7f
        s_add_u32 s{sA}, s{sA}, 0x2f573b1d
        s_and_b32 s{sB}, s{sE}, 0x80808080
        s_xor_b32 s{sTAG}, s{sA}, s{sB}
        s_and_b32 s{sT}, s{sTAG}, 0xff
        s_bfe_u32 s{sT+1}, s{sTAG}, 0x80008
        s_bfe_u32 s{sT+2}, s{sTAG}, 0x80010
        s_lshr_b32 s{sT+3}, s{sTAG}, 24
        s_lshl_b32 s{sA}, s{sWV}, 10
        v_add_u32 v{vA1}, s{sA}, v{vA2}
        ds_write_b128 v{vA1}, {v(ACC,4)}
        s_waitcnt lgkmcnt(0)
        s_barrier
        s_cmp_eq_u32 s{sWV}, 3
        s_cbranch_scc0 L_nostrip
        s_cmp_ge_u32 s2, 208
        s_cbranch_scc1 L_nostrip
        v_and_b32 v{T}, 1, v{vL}
        v_bfe_u32 v{T+1}, v{vL}, 1, 3
        v_lshlrev_b32 v{T}, 8, v{T}
        v_lshl_add_u32 v{T}, v{T+1}, 4, v{T}""")
        for p in range(4):
            A(f"ds_read_b128 {v(S+8*p,4)}, v{T} offset:{p*1024}")
            A(f"ds_read_b128 {v(S+8*p+4,4)}, v{T} offset:{p*1024+640}")
        AA(f"""s_lshl_b32 s{sA}, s{sSO}, 8
        s_add_u32 s{sA}, s{sA}, {WS_QGU}
        s_waitcnt lgkmcnt(0)""")
        for st in (4,8,16):
            for b in range(0,32,2*st):
                for k in (0,2):
                    A(f"v_pk_add_f32 {v(S+b+k,2)}, {v(S+b+k,2)}, {v(S+b+st+k,2)}")
        AA(f"""v_cvt_pk_bf16_f32 v{S+4}, v{S}, v{S+1}
        v_cvt_pk_bf16_f32 v{S+5}, v{S+2}, v{S+3}
        v_lshl_or_b32 v{S}, v{S+4}, 16, s{sT}
        v_and_b32 v{S+1}, 0xffff0000, v{S+4}
        v_lshl_or_b32 v{S+2}, v{S+5}, 16, s{sT+2}
        v_and_b32 v{S+3}, 0xffff0000, v{S+5}
        v_or_b32 v{S+1}, s{sT+1}, v{S+1}
        v_or_b32 v{S+3}, s{sT+3}, v{S+3}
        s_mov_b64 exec, 0xffff
        buffer_store_dwordx4 {v(S,4)}, v{vA2}, {s(rWS,4)}, s{sA} offen sc1
        s_mov_b64 exec, -1
        L_nostrip:""")
        stamp(1)
    task(strip_pub, cost=40)

    def check(regs, tags, acc, mask):
        o = [f"v_xor_b32 v{r}, {t}, v{r}" for r,t in zip(regs,tags)]
        rs = list(regs)
        o.append(f"v_or3_b32 v{acc}, v{rs[0]}, v{rs[1]}, v{rs[2]}"); rs = rs[3:]
        while len(rs)>=2:
            o.append(f"v_or3_b32 v{acc}, v{acc}, v{rs[0]}, v{rs[1]}"); rs = rs[2:]
        if rs: o.append(f"v_or_b32 v{acc}, v{acc}, v{rs[0]}")
        o += [f"v_and_b32 v{acc}, {mask}, v{acc}", f"v_cmp_ne_u32 vcc, 0, v{acc}"]
        return o
    def poll_pair(tagname, pre, lds_, regs, tags, acc, mask, minstep):
        def fissue():
            for x in pre: A(x)
            for x in lds_: ids[tagname] = vm.issue(x)
        task(fissue, minstep=minstep, cost=len(pre)+len(lds_))
        def fcheck():
            A(f"s_mov_b32 s{sCNT}, 0")
            A(f"L_{tagname}_chk:")
            for x in check(regs,tags,acc,mask): A(x)
            A(f"s_cbranch_vccnz L_{tagname}_retry")
            A(f"L_{tagname}_ok:")
            OUTL.extend([f"L_{tagname}_retry:", f"s_add_u32 s{sCNT}, s{sCNT}, 1", f"s_cmp_ge_u32 s{sCNT}, {SPIN}", f"s_cbranch_scc1 L_{tagname}_ok"]
                        + lds_ + ["s_waitcnt vmcnt(0)", f"s_branch L_{tagname}_chk"])
        return fcheck
    tg4 = [f"s{sT+k}" for k in range(4)]
    pre = [f"v_and_b32 v{vA1}, 15, v{vL}", f"v_lshlrev_b32 v{vA1}, 5, v{vA1}", f"v_and_b32 v{vST}, 8, v{vL}",
           f"v_lshl_add_u32 v{vA1}, v{vST}, 6, v{vA1}", f"v_xor_b32 v{vST}, 0x200, v{vA1}",
           f"s_lshl_b32 s{sSO}, s{sH}, 10", f"s_add_u32 s{sSO}, s{sSO}, {WS_QGU}"]
    lq = [f"buffer_load_dwordx4 {v(T,4)}, v{vA1}, {s(rWS,4)}, s{sSO} offen sc1",
          f"buffer_load_dwordx4 {v(T+4,4)}, v{vA1}, {s(rWS,4)}, s{sSO} offen offset:16 sc1",
          f"buffer_load_dwordx4 {v(T+8,4)}, v{vST}, {s(rWS,4)}, s{sSO} offen sc1",
          f"buffer_load_dwordx4 {v(T+12,4)}, v{vST}, {s(rWS,4)}, s{sSO} offen offset:16 sc1"]
    fc = poll_pair("q", pre, lq, list(range(T,T+16)), tg4*4, PT, "0xffff", 18+P-D+3)
    def fq():
        fc()
        A(f"s_mov_b32 s{sA}, 0x07060302")
        for k in range(8): A(f"v_perm_b32 v{Q+k}, v{T+2*k+1}, v{T+2*k}, s{sA}")
        A(f"v_mov_b32 v{vMX}, 0xff800000")
        stamp(2)
    task(fq, need=("q",), cost=40)
    SC = hex(f2u(128**-0.5))
    def kdots(n):
        o=[]; kt = KT+4*(n&1)
        r0 = slot(lpos[("K",2*n)]); r1 = slot(lpos[("K",2*n+1)])
        for k in range(4):
            for (acc,r,q) in ((kt,r0,Q),(kt+1,r0,Q+4),(kt+2,r1,Q),(kt+3,r1,Q+4)):
                o.append(f"v_dot2_f32_bf16 v{acc}, v{r+k}, v{q+k}, 0" if k==0 else f"v_dot2c_f32_bf16 v{acc}, v{r+k}, v{q+k}")
        return o
    def kpost(n):
        kt = KT+4*(n&1); a,b = kt,kt+2
        o=[]
        o += [f"v_add_f32_dpp v{x}, v{x+1}, v{x} row_ror:8 row_mask:0xf bank_mask:0xf" for x in (a,b)]
        for md in ("quad_perm:[1,0,3,2]","quad_perm:[2,3,0,1]","row_half_mirror"):
            o += [f"v_add_f32_dpp v{x}, v{x}, v{x} {md} row_mask:0xf bank_mask:0xf" for x in (a,b)]
        o += [f"v_cvt_pk_bf16_f32 v{a+1}, v{a}, v{b}", f"v_max3_f32 v{vMX}, v{vMX}, v{a}, v{b}",
              f"v_lshlrev_b32 v{a}, 16, v{a+1}", f"v_and_b32 v{b}, 0xffff0000, v{a+1}",
              f"v_mul_f32 v{a}, {SC}, v{a}", f"v_mul_f32 v{b}, {SC}, v{b}", f"v_cvt_pk_bf16_f32 v{S+n}, v{a}, v{b}"]
        return o
    for n in range(32):
        d = kdots(n)
        o = d if n==0 else d[:2]+merge(d[2:], kpost(n-1))
        task("\n".join(o), need=(("K",2*n),("K",2*n+1)), frees=(("K",2*n),("K",2*n+1)))
    LOG2E = hex(f2u(1.4426950408889634))
    o = kpost(31) + allreduce("v_max_f32", vMX, PT, rows=False) + bfr(vMX,vMX) + [f"v_mul_f32 v{vMX}, {SC}, v{vMX}"] + bfr(vMX,vMX)
    o += [f"v_mov_b32 v{vSL}, 0", f"v_mov_b32 v{PT+3}, 0"]
    task("\n".join(o))
    for n in range(0,32,2):
        o1=[];o2=[]
        for (oo,nn,a) in ((o1,n,KT),(o2,n+1,KT+2)):
            oo += [f"v_lshlrev_b32 v{a}, 16, v{S+nn}", f"v_and_b32 v{a+1}, 0xffff0000, v{S+nn}",
                   f"v_sub_f32 v{a}, v{a}, v{vMX}", f"v_sub_f32 v{a+1}, v{a+1}, v{vMX}",
                   f"v_mul_f32 v{a}, {LOG2E}, v{a}", f"v_mul_f32 v{a+1}, {LOG2E}, v{a+1}",
                   f"v_exp_f32 v{a}, v{a}", f"v_exp_f32 v{a+1}, v{a+1}",
                   f"v_add_f32 v{vSL}, v{vSL}, v{a}", f"v_add_f32 v{PT+3}, v{PT+3}, v{a+1}",
                   f"v_cvt_pk_bf16_f32 v{S+nn}, v{a}, v{a+1}"]
        task("\n".join(merge(o1,o2)), cost=26)
    def ml_pub():
        o = [f"v_add_f32 v{vSL}, v{vSL}, v{PT+3}"] + allreduce("v_add_f32", vSL, PT, rows=False)
        o += [f"v_readlane_b32 s{sM0}, v{vMX}, 0", f"v_readlane_b32 s{sM1}, v{vMX}, 8",
              f"v_mov_b32_dpp v{PT+3}, v{vSL} row_ror:8 row_mask:0xf bank_mask:0xf",
              f"v_mov_b32_dpp v{PT+2}, v{vMX} row_ror:8 row_mask:0xf bank_mask:0xf",
              f"v_and_or_b32 v{PT}, v{vMX}, v{vMK}, s{sT}", f"v_and_or_b32 v{PT+1}, v{vSL}, v{vMK}, s{sT+1}",
              f"v_and_or_b32 v{PT+2}, v{PT+2}, v{vMK}, s{sT+2}", f"v_and_or_b32 v{PT+3}, v{PT+3}, v{vMK}, s{sT+3}",
              f"s_lshl_b32 s{sSO}, s{sH}, 10", f"s_add_u32 s{sSO}, s{sSO}, {WS_ML}",
              f"s_lshl_b32 s{sA}, s{sS}, 2", f"s_add_u32 s{sA}, s{sA}, s{sWV}", f"s_lshl_b32 s{sA}, s{sA}, 4", f"s_add_u32 s{sA}, s{sA}, s{sSO}",
              "s_mov_b64 exec, 1"]
        for x in o: A(x)
        vm.issue(f"buffer_store_dwordx4 {v(PT,4)}, v{vA2}, {s(rWS,4)}, s{sA} offen sc1")
        A("s_mov_b64 exec, -1")
        stamp(3)
    task(ml_pub, cost=30)
    task("\n".join(abuild(A0, S, 0)))
    def vtask(i):
        o = abuild(AB[(i+1)&1], S+(i+1)//2, (i+1)&1) if i<63 else []
        o = o[:2]+[mfma(ACC, AB[i&1], slot(lpos[("V",i)]), i==0)]+o[2:]
        task("\n".join(o), need=(("V",i),), frees=(("V",i),))
    def side_h(vi):
        pre = [f"v_lshrrev_b32 v{vST}, 3, v{vL}", f"v_lshlrev_b32 v{vA1}, 4, v{vST}", f"v_and_b32 v{vST}, 3, v{vST}",
               f"v_lshlrev_b32 v{HP}, 3, v{vST}", f"v_lshrrev_b32 v{HP}, v{HP}, s{sTAG}" , f"v_and_b32 v{HP}, 0xff, v{HP}",
               f"v_lshlrev_b32 v{vST}, 2, v{vST}",
               f"s_and_b32 s{sA}, s2, 127", f"s_mul_i32 s{sA}, s{sA}, 144", f"s_add_u32 s{sC}, s{sA}, {WS_QGU+64*256}", f"s_add_u32 s{sD_}, s{sA}, {WS_QGU+136*256}"]
        pre[4] = f"v_lshrrev_b32_e64 v{HP}, v{HP}, s{sTAG}"
        lh = [f"buffer_load_dwordx4 {v(T,4)}, v{vA1}, {s(rWS,4)}, s{sC} offen sc1",
              f"buffer_load_dwordx4 {v(T+8,4)}, v{vA1}, {s(rWS,4)}, s{sD_} offen sc1",
              f"buffer_load_dword v{T+4}, v{vST}, {s(rWS,4)}, s{sC} offen offset:128 sc1",
              f"buffer_load_dword v{T+12}, v{vST}, {s(rWS,4)}, s{sD_} offen offset:128 sc1"]
        regs = [T,T+1,T+2,T+3,T+4,T+8,T+9,T+10,T+11,T+12]
        fc = poll_pair("h", pre, lh, regs, tg4+[f"v{HP}"]+tg4+[f"v{HP}"], PT, "0xffff", 0)
        def later():
            task(fc, need=("h",), cost=20)
            ls=[]
            for k in range(5):
                g=T+k; t=KT+k
                ls.append([f"v_mul_f32 v{t}, {hex(f2u(-1.4426950408889634))}, v{g}", f"v_exp_f32 v{t}, v{t}", f"v_add_f32 v{t}, 1.0, v{t}",
                           f"v_rcp_f32 v{t}, v{t}", f"v_mul_f32 v{t}, v{g}, v{t}"] + bfr(t,t) + [f"v_mul_f32 v{t}, v{t}, v{T+8+k}"])
            o = merge(*ls) + [f"v_cvt_pk_bf16_f32 v{HP}, v{KT}, v{KT+1}", f"v_cvt_pk_bf16_f32 v{HP+1}, v{KT+2}, v{KT+3}", f"v_cvt_pk_bf16_f32 v{HP+2}, v{KT+4}, v{KT+4}"]
            split_task(o, 22)
        return later
    def side_ml(vi):
        lm = [f"buffer_load_dwordx4 {v(T,4)}, v{vA2}, {s(rWS,4)}, s{sSO} offen sc1"]
        fc = poll_pair("ml", [], lm, [T,T+1,T+2,T+3], tg4, PT, "0xff", 0)
        def later():
            task(fc, need=("ml",), cost=12)
            M0,M1 = T+4,T+5
            o = [f"v_mov_b32 v{M0}, v{T}", f"v_mov_b32 v{M1}, v{T+2}"]
            o += merge(allreduce("v_max_f32",M0,T+6), allreduce("v_max_f32",M1,T+7))
            o += [f"v_sub_f32 v{T}, v{T}, v{M0}", f"v_sub_f32 v{T+2}, v{T+2}, v{M1}",
                  f"v_sub_f32 v{M0}, s{sM0}, v{M0}", f"v_sub_f32 v{M1}, s{sM1}, v{M1}",
                  f"v_mul_f32 v{T}, {LOG2E}, v{T}", f"v_mul_f32 v{T+2}, {LOG2E}, v{T+2}",
                  f"v_exp_f32 v{T}, v{T}", f"v_exp_f32 v{T+2}, v{T+2}", f"v_cmp_gt_u32 vcc, 32, v{vL}",
                  f"v_mul_f32 v{T}, v{T}, v{T+1}", f"v_mul_f32 v{T+2}, v{T+2}, v{T+3}",
                  f"v_cndmask_b32 v{M0}, v{M1}, v{M0}, vcc"]
            o += merge(allreduce("v_add_f32",T,T+6), allreduce("v_add_f32",T+2,T+7))
            o += [f"v_cmp_gt_u32 vcc, 32, v{vL}", f"v_mul_f32 v{M0}, {LOG2E}, v{M0}", f"v_exp_f32 v{M0}, v{M0}",
                  f"v_cndmask_b32 v{T}, v{T+2}, v{T}, vcc", f"v_rcp_f32 v{T}, v{T}", f"v_mul_f32 v{vFA}, v{M0}, v{T}"]
            split_task(o, 22)
        return later
    def side_late():
        def f():
            AA(f"""s_mul_i32 s{sA}, s2, {36*1152}
            s_lshl_b32 s{sB}, s{sH}, 3
            s_add_u32 s{sB}, s{sB}, s{sS}
            s_sub_u32 s{sB}, s{sB}, 8
            s_mul_i32 s{sB}, s{sB}, {32*1152}
            s_cmp_lt_u32 s2, 128
            s_cselect_b32 s{sA}, s{sA}, s{sB}
            s_cselect_b32 s{rLT}, s{pD}, s{pWO}
            s_cselect_b32 s{rLT+1}, s{pD+1}, s{pWO+1}
            s_mov_b32 s{rLT+2}, {4096*1152}
            s_cselect_b32 s{rLT+2}, {4608*1152}, s{rLT+2}
            s_mov_b32 s{rLT+3}, 0x20000
            s_mul_i32 s{sB}, s{sWV}, 384
            s_add_u32 s{sA}, s{sA}, s{sB}
            v_lshrrev_b32 v{T}, 3, v{vL}
            v_and_b32 v{T+1}, 7, v{vL}
            v_lshl_add_u32 v{T+2}, v{T+1}, 4, s{sA}
            v_mov_b32 v{T+3}, 4608
            v_mad_u32_u24 v{vST}, v{T}, v{T+3}, v{T+2}
            v_mov_b32 v{T+3}, 1152
            v_mad_u32_u24 v{vA1}, v{T}, v{T+3}, v{T+2}
            v_add_u32 v{vA1}, {32*1152}, v{vA1}
            v_cmp_gt_u32 vcc, 32, v{vL}
            v_mov_b32 v{T+3}, {OOB}
            v_cndmask_b32 v{vA1}, v{T+3}, v{vA1}, vcc""")
            srd(rO,pO,1152)
        task(f, cost=30)
    pend = {}
    for i in range(64):
        if i==hstep: pend[i+D+1] = side_h(i)
        if i==mlstep: pend[i+D+1] = side_ml(i)
        if i in pend: pend.pop(i)()
        if i==mlstep+D+2: side_late()
        vtask(i)
    assert not pend and hstep+D+1 < mlstep and mlstep+D+2 < 64-D-2

    state = dict(ti=0, freed=set())
    def needs_ok(t, vm_, force):
        for nd in t["need"]:
            i = ids[nd] if nd in ids else lid.get(nd)
            if i is None:
                assert not force, nd
                return False
            if i > vm_.done:
                if force: vm_.wait(i)
                else: return False
        return True
    def run_tasks(step, bud, until=None):
        while state["ti"] < len(tasks):
            t = tasks[state["ti"]]
            force = until is not None and until not in state["freed"]
            if not force:
                if bud <= 0 or t["minstep"] > step or not needs_ok(t, vm, False): break
            else:
                needs_ok(t, vm, True)
            t["fn"](); bud -= t["cost"]; state["ti"] += 1
            state["freed"].update(t["frees"])
    for n in range(len(loads)):
        if n >= R: run_tasks(n, 0, until=loads[n-R])
        vm.pace((De+5 if n < De else De) if n<18 else D)
        issue_load(n)
        run_tasks(n, budget)
    rest = tasks[state["ti"]:]
    assert all(len(t["frees"])==1 and t["frees"][0][0]=="V" for t in rest), "side jobs left in tail"
    stamp(4)
    NL = len(loads)
    vm0 = vm
    AA(f"""s_cmp_eq_u32 s{sWV}, 3
    s_cbranch_scc1 L_tail_w3
    s_cmp_lt_u32 s2, 128
    s_cbranch_scc1 L_tail_down""")
    def scale(): return [f"v_mul_f32 v{ACC+k}, v{ACC+k}, v{vFA}" for k in range(4)]
    def tail_late(role):
        vm = vm0.clone()
        ll = [(g,b) for g in range(4) for b in range(3)] + ([(4,b) for b in range(3)] if role=="down" else [])
        freed = set(state["freed"])
        lidl = {}
        k = [0]
        def issue_late():
            g,b = ll[k[0]]; n = NL+k[0]
            assert loads[n-R] in freed
            va,off = (vST, g*1152+b*128) if g<4 else (vA1, b*128)
            lidl[(g,b)] = (vm.issue(f"buffer_load_dwordx4 {v(slot(n),4)}, v{va}, {s(rLT,4)}, 0 offen offset:{off} {ntf}"), slot(n))
            k[0]+=1
        def fill():
            while k[0] < len(ll) and vm.n - vm.done < Dl: issue_late()
        fill()
        for t in rest:
            vm.wait(lid[t["need"][0]]); fill(); t["fn"](); freed.update(t["frees"])
        P2V = KT; t0,t1,t2 = KT+1,KT+2,KT+3
        AA(f"""s_lshl_b32 s{sA}, s{sWV}, 10
        v_add_u32 v{t0}, s{sA}, v{vA2}""")
        for x in scale(): A(x)
        AA(f"""ds_write_b128 v{t0}, {v(ACC,4)} offset:4096
        s_waitcnt lgkmcnt(0)
        s_barrier""")
        while k[0] < len(ll):
            vm.pace(Dl); issue_late()
        p2 = f"""v_lshrrev_b32 v{t0}, 5, v{vL}
        v_bfe_u32 v{t1}, v{vL}, 3, 1
        v_lshl_or_b32 v{t0}, v{t1}, 1, v{t0}
        v_bfe_u32 v{t1}, v{vL}, 2, 1
        v_lshl_or_b32 v{t1}, v{t0}, 1, v{t1}
        v_cmp_gt_u32 vcc, 3, v{t0}
        v_and_b32 v{t0}, 3, v{vL}
        v_lshlrev_b32 v{t0}, 5, v{t0}
        v_and_or_b32 v{t0}, v{vL}, 16, v{t0}
        v_lshl_or_b32 v{t0}, v{t1}, 15, v{t0}
        v_mov_b32 v{t1}, {OOB}
        s_mul_i32 s{sA}, s{sWV}, {6*32768}
        s_lshl_b32 s{sB}, s2, 7
        s_add_u32 s{sA}, s{sA}, s{sB}
        s_add_u32 s{sA}, s{sA}, {WS_P2}
        v_cndmask_b32 v{P2V}, v{t1}, v{t0}, vcc"""
        if role=="wo":
            lo = [f"buffer_load_dwordx4 {v(T,4)}, v{vA1}, {s(rWS,4)}, s{sC} offen sc1",
                  f"buffer_load_dwordx4 {v(T+4,4)}, v{vA1}, {s(rWS,4)}, s{sD_} offen sc1"]
            AA(f"""v_and_b32 v{t0}, 7, v{vL}
            v_lshlrev_b32 v{t0}, 10, v{t0}
            v_lshrrev_b32 v{t1}, 3, v{vL}
            v_lshl_add_u32 v{vA1}, v{t1}, 4, v{t0}
            s_lshl_b32 s{sC}, s{sH}, 14
            s_lshl_b32 s{sD_}, s{sS}, 7
            s_add_u32 s{sC}, s{sC}, s{sD_}
            s_add_u32 s{sC}, s{sC}, {WS_OP-8*128}
            s_add_u32 s{sD_}, s{sC}, 8192
            s_mov_b32 s{sCNT}, 0""")
            for x in lo: A(x)
            AA(p2)
            AA(f"""s_branch L_o_wait
            L_o_retry:
            s_add_u32 s{sCNT}, s{sCNT}, 1
            s_cmp_ge_u32 s{sCNT}, {SPIN}
            s_cbranch_scc1 L_o_ok""")
            for x in lo: A(x)
            A("L_o_wait:")
            vm.drain()
            for x in check(list(range(T,T+8)), tg4*2, PT, "0xff"): A(x)
            AA(f"""v_pk_add_f32 {v(T,2)}, {v(T,2)}, {v(T+4,2)}
            v_pk_add_f32 {v(T+2,2)}, {v(T+2,2)}, {v(T+6,2)}
            s_cbranch_vccnz L_o_retry
            L_o_ok:""")
            for md in ("quad_perm:[1,0,3,2]","quad_perm:[2,3,0,1]","row_half_mirror"):
                for x in range(T,T+4): A(f"v_add_f32_dpp v{x}, v{x}, v{x} {md} row_mask:0xf bank_mask:0xf")
            AA(f"""v_cvt_pk_bf16_f32 v{HP}, v{T}, v{T+1}
            v_cvt_pk_bf16_f32 v{HP+1}, v{T+2}, v{T+3}""")
        else:
            AA(p2)
        ng = 5 if role=="down" else 4
        for x in abuild(A0, HP, 0): A(x)
        for g in range(ng):
            nx = abuild(AB[(g+1)&1], HP+(g+1)//2, (g+1)&1) if g+1<ng else []
            for b in range(3):
                i,r = lidl[(g,b)]
                if b==0 and nx: A(nx.pop(0)); A(nx.pop(0))
                vm.wait(i)
                A(mfma(LACC+4*b, AB[g&1], r, g==0))
                if nx: A(nx.pop(0))
        for k2 in range(4): A(f"v_permlane32_swap_b32 v{LACC+k2}, v{LACC+4+k2}")
        for k2 in range(4): A(f"v_permlane32_swap_b32 v{LACC+8+k2}, v{T+8+k2}")
        for k2 in range(4): A(f"v_add_f32_dpp v{LACC+k2}, v{LACC+4+k2}, v{LACC+k2} row_ror:8 row_mask:0xf bank_mask:0xf")
        for k2 in range(4): A(f"v_add_f32_dpp v{LACC+k2}, v{LACC+8+k2}, v{T+8+k2} row_ror:8 row_mask:0xf bank_mask:0xc")
        for k2 in range(4): A(f"v_and_or_b32 v{LACC+k2}, v{LACC+k2}, v{vMK}, s{sT+k2}")
        A(f"buffer_store_dwordx4 {v(LACC,4)}, v{P2V}, {s(rWS,4)}, s{sA} offen sc1")
        stamp(5)
        A("s_branch L_fin")
    tail_late("wo")
    A("L_tail_down:")
    tail_late("down")
    A("L_tail_w3:")
    vm = vm0.clone()
    XV = KT+4; OV = KT+5; CV = KT+6; PV = KT+7
    AA(f"""s_and_b32 s{sA}, s2, 7
    s_lshr_b32 s{sB}, s2, 6
    s_lshl_b32 s{sB}, s{sB}, 3
    s_add_u32 s{sM0}, s{sA}, s{sB}
    s_bfe_u32 s{sB}, s2, 0x30003
    s_lshl_b32 s{sC}, s{sM0}, 6
    s_lshl_b32 s{sD_}, s{sB}, 3
    s_add_u32 s{sC}, s{sC}, s{sD_}
    v_bfe_u32 v{KT}, v{vL}, 3, 1
    v_bfe_u32 v{KT+1}, v{vL}, 4, 1
    v_lshl_or_b32 v{KT}, v{KT}, 1, v{KT+1}
    v_lshl_add_u32 v{OV}, v{KT}, 1, s{sC}""")
    ix = vm.issue(f"buffer_load_ushort v{XV}, v{OV}, {s(rX,4)}, 0 offen")
    AA(f"""s_lshl_b32 s{sC}, s{sM0}, 15
    s_lshl_b32 s{sD_}, s{sB}, 4
    s_add_u32 s{sC}, s{sC}, s{sD_}
    s_add_u32 s{sC}, s{sC}, {WS_P2}
    v_lshl_add_u32 v{CV}, v{vL}, 7, s{sC}
    v_and_b32 v{KT}, 15, v{vL}
    v_lshlrev_b32 v{KT}, 5, v{KT}
    v_and_or_b32 v{KT}, v{vL}, 16, v{KT}
    v_lshrrev_b32 v{KT+1}, 5, v{vL}
    v_lshl_or_b32 v{PV}, v{KT+1}, 9, v{KT}
    s_lshl_b32 s{sA}, s{sH}, 4
    s_add_u32 s{sA}, s{sA}, s{sS}
    s_lshl_b32 s{sA}, s{sA}, 10
    s_add_u32 s{sA}, s{sA}, {WS_OP}
    s_mov_b32 s{sB}, 8192
    s_mov_b32 s{sC}, 16384
    s_mov_b32 s{sD_}, 24576""")
    for t in rest:
        vm.wait(lid[t["need"][0]]); t["fn"]()
    for x in scale(): A(x)
    if stamps: A("s_waitcnt lgkmcnt(0)")
    A("s_barrier")
    for p in range(3): A(f"ds_read_b128 {v(T+4*p,4)}, v{vA2} offset:{4096+p*1024}")
    A("s_waitcnt lgkmcnt(1)")
    for k2 in (0,2): A(f"v_pk_add_f32 {v(T+k2,2)}, {v(T+k2,2)}, {v(T+4+k2,2)}")
    A("s_waitcnt lgkmcnt(0)")
    for k2 in (0,2): A(f"v_pk_add_f32 {v(ACC+k2,2)}, {v(T+8+k2,2)}, {v(ACC+k2,2)}")
    for k2 in (0,2): A(f"v_pk_add_f32 {v(ACC+k2,2)}, {v(T+k2,2)}, {v(ACC+k2,2)}")
    for k2 in range(4): A(f"v_and_or_b32 v{ACC+k2}, v{ACC+k2}, v{vMK}, s{sT+k2}")
    A(f"buffer_store_dwordx4 {v(ACC,4)}, v{PV}, {s(rWS,4)}, s{sA} offen sc1")
    stamp(5)
    AA(f"""s_cmp_ge_u32 s{sM0}, 18
    s_cbranch_scc1 L_fin
    s_mov_b32 s{sCNT}, 0
    L_f_retry:
    s_add_u32 s{sCNT}, s{sCNT}, 1
    s_cmp_ge_u32 s{sCNT}, {SPIN}
    s_cbranch_scc1 L_f_ok""")
    for k2,so in enumerate(["0",f"s{sB}",f"s{sC}",f"s{sD_}"]):
        A(f"buffer_load_dwordx4 {v(T+4*k2,4)}, v{CV}, {s(rWS,4)}, {so} offen sc1")
    A("s_waitcnt vmcnt(0)")
    for x in check(list(range(T,T+16)), tg4*4, PT, "0xff"): A(x)
    for b in (0,8):
        for k2 in (0,2): A(f"v_pk_add_f32 {v(T+b+k2,2)}, {v(T+b+k2,2)}, {v(T+b+4+k2,2)}")
    AA(f"""s_cbranch_vccnz L_f_retry
    L_f_ok:""")
    for k2 in range(4): A(f"v_permlane32_swap_b32 v{T+k2}, v{T+8+k2}")
    for k2 in (0,2): A(f"v_pk_add_f32 {v(T+k2,2)}, {v(T+k2,2)}, {v(T+8+k2,2)}")
    AA(f"""v_lshlrev_b32 v{XV}, 16, v{XV}
    v_permlane16_swap_b32 v{T}, v{T+1}
    v_permlane16_swap_b32 v{T+2}, v{T+3}
    v_add_f32 v{T}, v{T}, v{T+1}
    v_add_f32 v{T+2}, v{T+2}, v{T+3}
    v_add_f32_dpp v{T}, v{T}, v{T} row_ror:8 row_mask:0xf bank_mask:0x3
    v_add_f32_dpp v{T}, v{T+2}, v{T+2} row_ror:8 row_mask:0xf bank_mask:0xc
    v_add_f32_dpp v{T}, v{T}, v{T} quad_perm:[1,0,3,2] row_mask:0xf bank_mask:0xf
    v_add_f32_dpp v{T}, v{T}, v{T} quad_perm:[2,3,0,1] row_mask:0xf bank_mask:0xf
    v_add_f32_dpp v{T}, v{T}, v{T} row_half_mirror row_mask:0xf bank_mask:0xf
    v_cvt_pk_bf16_f32 v{T}, v{T}, v{T}
    v_and_b32 v{T}, 0xffff0000, v{T}
    v_permlane32_swap_b32 v{T}, v{T+1}
    v_add_f32 v{T+1}, v{XV}, v{T+1}
    v_cvt_pk_bf16_f32 v{T+1}, v{T+1}, v{T+1}
    v_and_b32 v{T+1}, 0xffff0000, v{T+1}
    v_add_f32 v{T}, v{T}, v{T+1}
    v_cvt_pk_bf16_f32 v{T}, v{T}, v{T}
    s_mov_b64 exec, 0x01010101
    buffer_store_short v{T}, v{OV}, {s(rO,4)}, 0 offen {outflags}
    s_cmp_eq_u32 s2, 0
    s_cbranch_scc0 L_fin
    v_mov_b32 v{T+1}, s{sTAG}
    s_mov_b64 exec, 1
    buffer_store_dword v{T+1}, v{vA2}, {s(rWS,4)}, 0 offen sc1""")
    A("L_fin:")
    if dbg:
        AA(f"""s_memrealtime s[88:89]
        s_waitcnt lgkmcnt(0)
        s_cmp_eq_u32 s{sWV}, 3
        s_cbranch_scc0 L_nodbg
        s_cmp_lt_u32 s2, 8
        s_cbranch_scc0 L_nodbg
        s_mov_b64 exec, 1
        s_sub_u32 s88, s88, s92
        s_lshl_b32 s{sA}, s2, 2
        v_mov_b32 v{KT}, s{sA}
        v_mov_b32 v{KT+1}, s88
        v_mov_b32 v{KT+2}, s92
        v_and_b32 v{KT+2}, 0xffff, v{KT+2}
        global_store_dword v{KT}, v{KT+1}, {s(pDBG,2)}
        global_store_dword v{KT}, v{KT+2}, {s(pDBG,2)} offset:32
        L_nodbg:""")
    if spin_us:
        AA(f"""L_spin:
        s_memrealtime s[88:89]
        s_waitcnt lgkmcnt(0)
        s_sub_u32 s88, s88, s92
        s_cmp_lt_u32 s88, {spin_us*100}
        s_cbranch_scc1 L_spin""")
    if stamps:
        AA(f"""s_memrealtime s[88:89]
        s_getreg_b32 s90, hwreg(HW_REG_XCC_ID)
        s_waitcnt lgkmcnt(0)
        s_mov_b64 exec, 1
        s_add_u32 s{pWS}, s{pWS}, 0x8000000
        s_addc_u32 s{pWS+1}, s{pWS+1}, 0
        s_lshl_b32 s{sA}, s2, 2
        s_add_u32 s{sA}, s{sA}, s{sWV}
        s_lshl_b32 s{sA}, s{sA}, 5
        v_mov_b32 v{KT}, s{sA}""")
        for k2 in range(6): A(f"v_mov_b32 v{S+k2}, s{sSTAMP+2*k2}")
        AA(f"""v_mov_b32 v{S+6}, s88
        v_mov_b32 v{S+7}, s90
        global_store_dwordx4 v{KT}, {v(S,4)}, {s(pWS,2)}
        global_store_dwordx4 v{KT}, {v(S+4,4)}, {s(pWS,2)} offset:16""")
    A("s_endpgm")
    for x in OUTL: A(x)
    A("L_end:")
    A("s_endpgm")
    body = pad(L)
    txt = HDR + f"; @launch grid=(256,1,1) block=(256,1,1) lds={lds}\n"
    txt += f""".amdgcn_target "amdgcn-amd-amdhsa--gfx950"
.text
.globl {name}_kernel
.p2align 8
.type {name}_kernel,@function
"""
    txt += "\n".join(x if x.endswith(":") else "    "+x for x in body)
    txt += f"""
.section .rodata,"a"
.p2align 6
.amdhsa_kernel {name}_kernel
  .amdhsa_next_free_vgpr {NV}
  .amdhsa_next_free_sgpr 96
  .amdhsa_accum_offset {NV}
  .amdhsa_group_segment_fixed_size 0
  .amdhsa_kernarg_size 96
  .amdhsa_user_sgpr_count 2
  .amdhsa_user_sgpr_kernarg_segment_ptr 1
  .amdhsa_system_sgpr_workgroup_id_x 1
  .amdhsa_float_denorm_mode_32 3
.end_amdhsa_kernel
"""
    open(path,"w").write(txt)

if __name__=="__main__":
    gen("v1.s")
    gen("v1_st.s", stamps=True)
    gen("x_spin60.s", spin_us=60, dbg=True)
    gen("x_spin35.s", spin_us=35)
    gen("x_def.s", ntf="")
    gen("x_nopf.s", codepf=False)
    gen("x_sc1nt.s", ntf="sc1 nt")
```

```python
import sys, struct
from asmlib import pad, VM

KNAME = "parallel_sum__gqa_block_cached__swiglu_ffn__decode"
def f2u(x): return struct.unpack("<I", struct.pack("<f", x))[0]
HDR = open("cdna_kernels/%s.s.ref" % KNAME).read().split("; Override launch")[0]

WS_QGU = 0x1000
WS_ML  = 0x10000
WS_OP  = 0x20000
WS_P2  = 0x80000
WS_SIZE = 0x120000
OOB = 0x7ff00000
SPIN = 1<<17

def gen(path, D=8, De=8, Dl=10, P=32, R=36, G=4, sub=4, budget=40, stamps=False, lds=90000,
        codepf=True, mlstep=36, hstep=20, outflags="", name=KNAME, dbg=False, spin_us=0, ntf="nt", spin_wg=None, extra_k=None):
    L = []
    A = L.append
    def AA(s):
        for x in s.strip().split("\n"): A(x.strip())
    nv = [1]
    def V(n=1, al=1):
        b = (nv[0]+al-1)//al*al; nv[0] = b+n; return b
    vL = 0
    vKV = V(); vST = V(); vMK = V()
    SEL = V(8,4); A0 = V(4,4); A1 = V(4,4); ACC = V(4,4); LACC = V(12,4); Q = V(8,4)
    S = V(32,4); T = V(16,4); KT = V(8,4); PT = V(4,4)
    vMX = V(); vSL = V(); HP = V(3); vFA = V(); vA1 = V(); vA2 = V()
    RING = V(4*R,4)
    assert nv[0] <= 256, nv[0]
    NV = (nv[0]+7)//8*8
    def v(i,n=1): return f"v{i}" if n==1 else f"v[{i}:{i+n-1}]"
    sW,sWV,sH,sS = 2,3,4,5
    rK,rV,rST,rLT,rWS,rX,rO = 8,12,16,20,24,28,32
    sT = 36
    sE = 40; sOFF = 41; sSTR = 42; sA,sB,sC,sD_ = 43,44,45,46; sCNT = 47; sTAG=48
    sM0,sM1 = 49,50; sSO = 51
    sSTAMP = 52
    pX,pK,pV,pWQ,pWO,pG,pU,pD,pO,pDBG,pWS = 64,66,68,70,72,76,78,80,82,84,86
    def s(i,n=1): return f"s{i}" if n==1 else f"s[{i}:{i+n-1}]"
    def srd(d,p,n): AA(f"s_mov_b32 s{d}, s{p}\ns_mov_b32 s{d+1}, s{p+1}\ns_mov_b32 s{d+2}, {n}\ns_mov_b32 s{d+3}, 0x20000")
    nst=[0]
    def stamp(k):
        if stamps: A(f"s_memrealtime s[{sSTAMP+2*k}:{sSTAMP+2*k+1}]")
    OUTL = []
    vm = VM(A)

    A(f"{name}_kernel:")
    AA(f"""s_cmp_ge_u32 s2, 256
    s_cbranch_scc1 L_end
    s_load_dwordx16 s[64:79], s[0:1], 0
    s_load_dwordx8 s[80:87], s[0:1], 64""")
    stamp(0)
    if spin_us or dbg: A("s_memrealtime s[92:93]")
    t0,t1,t2,t3 = T,T+1,T+2,T+3
    AA(f"""v_lshrrev_b32 v{t0}, 6, v0
    v_lshrrev_b32 v{t1}, 3, v0
    v_readfirstlane_b32 s{sWV}, v{t0}
    v_and_b32 v{vL}, 63, v0
    s_and_b32 s{sH}, s2, 15
    s_lshr_b32 s{sS}, s2, 4
    v_and_b32 v{t2}, 7, v0
    v_mul_u32_u24 v{vA1}, 36, v{t1}
    v_lshlrev_b32 v{vA2}, 4, v{vL}
    v_lshlrev_b32 v{t3}, 2, v{vL}""")
    AA(f"""s_lshl_b32 s{sA}, s{sH}, 2
    s_add_u32 s{sA}, s{sA}, s{sS}
    s_sub_u32 s{sB}, s2, 64
    s_sub_u32 s{sC}, s2, 136
    s_cmp_ge_u32 s2, 136
    s_cselect_b32 s{sB}, s{sC}, s{sB}
    s_cmp_lt_u32 s2, 64
    s_cselect_b32 s{sB}, s{sA}, s{sB}
    s_cselect_b32 s{sSO}, s{sA}, s2
    s_movk_i32 s{sSTR}, 9216
    s_cselect_b32 s{sSTR}, 8192, s{sSTR}
    s_lshl_b32 s{sB}, s{sB}, 7
    s_mul_i32 s{sC}, s{sSTR}, 18
    v_mul_lo_u32 v{vST}, v{t1}, s{sC}
    v_lshl_add_u32 v{vST}, v{t2}, 4, v{vST}
    v_add_u32 v{vST}, s{sB}, v{vST}
    s_mul_i32 s{rST+2}, s{sSTR}, 576
    s_cmp_ge_u32 s2, 208
    s_cselect_b32 s{rST+2}, 0, s{rST+2}
    s_mov_b32 s{rST+3}, 0x20000
    s_mov_b32 s{rX+2}, 1152
    s_mov_b32 s{rX+3}, 0x20000
    s_mov_b32 s{sOFF}, 0
    s_waitcnt lgkmcnt(0)
    s_mov_b32 s{rX}, s{pX}
    s_mov_b32 s{rX+1}, s{pX+1}
    s_cmp_ge_u32 s2, 136
    s_cselect_b32 s{rST}, s{pU}, s{pG}
    s_cselect_b32 s{rST+1}, s{pU+1}, s{pG+1}
    s_cmp_lt_u32 s2, 64
    s_cselect_b32 s{rST}, s{pWQ}, s{rST}
    s_cselect_b32 s{rST+1}, s{pWQ+1}, s{rST+1}""")
    XS = T+4; XS4 = T+8
    XA = S+20
    idxs = vm.issue(f"buffer_load_dwordx4 {v(XS,4)}, v{vA2}, {s(rX,4)}, 0 offen")
    idxs = vm.issue(f"buffer_load_dword v{XS4}, v{t3}, {s(rX,4)}, 0 offen offset:1024")
    vm.issue(f"buffer_load_dwordx4 {v(XA,4)}, v{vA1}, {s(rX,4)}, 0 offen")
    vm.issue(f"buffer_load_dwordx4 {v(XA+4,4)}, v{vA1}, {s(rX,4)}, 0 offen offset:16")
    idxa = vm.issue(f"buffer_load_dword v{XA+8}, v{vA1}, {s(rX,4)}, 0 offen offset:32")
    A(f"s_load_dword s{sE}, {s(pWS,2)}, 0")

    loads = [("S",i) for i in range(18)] + [("K",i) for i in range(64)] + [("V",i) for i in range(64)]
    lid = {}
    def slot(n): return RING + 4*(n % R)
    lpos = {k:n for n,k in enumerate(loads)}
    def issue_load(n):
        kind,i = loads[n]
        r = slot(n)
        if kind=="S":
            lid[loads[n]] = vm.issue(f"buffer_load_dwordx4 {v(r,4)}, v{vST}, {s(rST,4)}, s{sOFF} offen {ntf}")
            if i<17: A(f"s_add_u32 s{sOFF}, s{sOFF}, s{sSTR}")
        else:
            off = (i//G)*(sub*4*G*1024) + (i%G)*1024
            imm = off & 0xfff; so = off-imm
            if i==0 or so != issue_load.last:
                A(f"s_mov_b32 s{sOFF}, {so}")
            issue_load.last = so
            lid[loads[n]] = vm.issue(f"buffer_load_dwordx4 {v(r,4)}, v{vKV}, {s(rK if kind=='K' else rV,4)}, s{sOFF} offen offset:{imm} {ntf}")
    issue_load.last = None

    tasks = []
    ids = {"xs":idxs, "xa":idxa}
    def task(body, need=(), frees=(), minstep=0, cost=None):
        if isinstance(body,str):
            lines = [x.strip() for x in body.strip().split("\n")]
            tasks.append(dict(fn=lambda lines=lines: [A(x) for x in lines], need=need, frees=frees, minstep=minstep, cost=cost or len(lines)))
        else:
            tasks.append(dict(fn=body, need=need, frees=frees, minstep=minstep, cost=cost or 8))
    def split_task(lines, n=16, need=(), **kw):
        for i in range(0,len(lines),n):
            task("\n".join(lines[i:i+n]), need=need, **kw)
    def allreduce(op, r, tmp, rows=True):
        o=[]
        if rows:
            for k in (8,4,2,1):
                o.append(f"{op}_dpp v{r}, v{r}, v{r} row_ror:{k} row_mask:0xf bank_mask:0xf")
        for sw in ("16","32"):
            o += [f"v_mov_b32 v{tmp}, v{r}", f"v_permlane{sw}_swap_b32 v{r}, v{tmp}", f"{op} v{r}, v{r}, v{tmp}"]
        return o
    def merge(*ls):
        o=[]; n=max(len(x) for x in ls)
        for i in range(n):
            for x in ls:
                if i<len(x): o.append(x[i])
        return o
    def bfr(d, x):
        return [f"v_cvt_pk_bf16_f32 v{d}, v{x}, v{x}", f"v_and_b32 v{d}, 0xffff0000, v{d}"]

    def setup1():
        srd(rK,pK,0x4000000); srd(rV,pV,0x4000000); srd(rWS,pWS,WS_SIZE)
        AA(f"""s_lshl_b32 s{sA}, s{sH}, 22
        s_and_b32 s{sB}, s{sS}, {sub-1}
        s_sub_u32 s{sC}, s{sS}, s{sB}
        s_lshl_b32 s{sC}, s{sC}, 18
        s_add_u32 s{sA}, s{sA}, s{sC}
        s_lshl_b32 s{sB}, s{sB}, 2
        s_add_u32 s{sB}, s{sB}, s{sWV}
        s_mul_i32 s{sB}, s{sB}, {G*1024}
        s_add_u32 s{sA}, s{sA}, s{sB}
        v_add_u32 v{vKV}, s{sA}, v{vA2}""")
        if codepf:
            AA(f"""s_getpc_b64 s[{sA+1}:{sA+2}]
            s_lshr_b32 s{sD_}, s2, 3
            s_lshl_b32 s{sD_}, s{sD_}, 10
            s_cmp_lt_u32 s{sD_}, L_end-{name}_kernel-2048
            s_cselect_b32 s{sD_}, s{sD_}, 0
            v_add_u32 v{PT}, s{sD_}, v{vA2}
            s_cmp_eq_u32 s{sWV}, 1
            s_cbranch_scc0 L_nopf
            global_load_dword v{PT+1}, v{PT}, s[{sA+1}:{sA+2}]
            L_nopf:""")
    task(setup1, cost=30, minstep=De-1)
    e=T+9; b0=T+10; b1=T+11; z=T+12
    sl = [f"v_and_b32 v{e}, 1, v{vL}", f"v_cmp_eq_u32 vcc, 0, v{e}",
          f"v_mov_b32 v{b0}, 0x0c0c0100", f"v_mov_b32 v{b1}, 0x0c0c0302", f"v_mov_b32 v{z}, 0x0c0c0c0c",
          f"v_mov_b32 v{SEL}, 0x01000c0c", f"v_mov_b32 v{SEL+1}, 0x03020c0c",
          f"v_cndmask_b32 v{b0}, v{SEL}, v{b0}, vcc", f"v_cndmask_b32 v{b1}, v{SEL+1}, v{b1}, vcc",
          f"v_bfe_u32 v{e}, v{vL}, 1, 2", f"v_mov_b32 v{vMK}, 0xffffff00"]
    for k in range(4):
        sl += [f"v_cmp_eq_u32 vcc, {k}, v{e}", f"v_cndmask_b32 v{SEL+k}, v{z}, v{b0}, vcc", f"v_cndmask_b32 v{SEL+4+k}, v{z}, v{b1}, vcc"]
    task("\n".join(sl))
    U = S
    ln=[]
    for k in range(5):
        ln += [f"v_lshlrev_b32 v{U+2*k}, 16, v{XS+k}", f"v_and_b32 v{U+2*k+1}, 0xffff0000, v{XS+k}"]
    m=S+10; tm=S+11; va=S+12; vb=S+13
    ln += [f"v_add_f32 v{m}, v{U}, v{U+1}", f"v_add_f32 v{tm}, v{U+2}, v{U+3}", f"v_add_f32 v{va}, v{U+4}, v{U+5}", f"v_add_f32 v{vb}, v{U+6}, v{U+7}",
           f"v_add_f32 v{m}, v{m}, v{tm}", f"v_add_f32 v{va}, v{va}, v{vb}", f"v_add_f32 v{tm}, v{U+8}, v{U+9}", f"v_add_f32 v{m}, v{m}, v{va}", f"v_add_f32 v{m}, v{m}, v{tm}"]
    ln += allreduce("v_add_f32", m, tm)
    ln += [f"v_mul_f32 v{m}, {hex(f2u(1/576))}, v{m}", f"v_cmp_gt_u32 vcc, 32, v{vL}"]
    for k in range(10): ln.append(f"v_sub_f32 v{U+k}, v{U+k}, v{m}")
    ln += [f"v_cndmask_b32 v{U+8}, 0, v{U+8}, vcc", f"v_cndmask_b32 v{U+9}, 0, v{U+9}, vcc"]
    ln += [f"v_mul_f32 v{va}, v{U}, v{U}", f"v_mul_f32 v{vb}, v{U+1}, v{U+1}"]
    for k in range(2,10,2): ln += [f"v_fmac_f32 v{va}, v{U+k}, v{U+k}", f"v_fmac_f32 v{vb}, v{U+k+1}, v{U+k+1}"]
    ln += [f"v_add_f32 v{va}, v{va}, v{vb}"]
    ln += allreduce("v_add_f32", va, tm)
    ln += [f"v_mul_f32 v{va}, {hex(f2u(1/576))}, v{va}"] + bfr(va,va) + bfr(m,m)
    ln += [f"v_add_f32 v{va}, {hex(f2u(1e-5))}, v{va}"] + bfr(va,va) + [f"v_sqrt_f32 v{va}, v{va}"] + bfr(va,va) + [f"v_rcp_f32 v{vb}, v{va}"]
    split_task(ln, 24, need=("xs",))
    XP = LACC
    for k in range(9):
        a,b,c,d = S,S+1,S+2,S+3
        task(f"""v_lshlrev_b32 v{a}, 16, v{XA+k}
        v_and_b32 v{b}, 0xffff0000, v{XA+k}
        v_sub_f32 v{a}, v{a}, v{m}
        v_sub_f32 v{b}, v{b}, v{m}
        v_cvt_pk_bf16_f32 v{b}, v{a}, v{b}
        v_lshlrev_b32 v{a}, 16, v{b}
        v_and_b32 v{b}, 0xffff0000, v{b}
        v_mul_f32 v{c}, v{a}, v{vb}
        v_mul_f32 v{d}, v{b}, v{vb}
        v_fma_f32 v{a}, -v{c}, v{va}, v{a}
        v_fma_f32 v{b}, -v{d}, v{va}, v{b}
        v_fmac_f32 v{c}, v{a}, v{vb}
        v_fmac_f32 v{d}, v{b}, v{vb}
        v_cvt_pk_bf16_f32 v{XP+k}, v{c}, v{d}""", need=("xa",))
    def abuild(dst, src, par): return [f"v_perm_b32 v{dst+k}, v{src}, v{src}, v{SEL+4*par+k}" for k in range(4)]
    def mfma(acc, a, b, first): return f"v_mfma_f32_16x16x32_bf16 {v(acc,4)}, {v(a,4)}, {v(b,4)}, {'0' if first else v(acc,4)}"
    AB = [A0,A1]
    task("\n".join(abuild(A0, XP, 0)))
    for i in range(18):
        o = abuild(AB[(i+1)&1], XP+(i+1)//2, (i+1)&1) if i<17 else []
        o = o[:2]+[mfma(ACC, AB[i&1], slot(lpos[("S",i)]), i==0)]+o[2:]
        task("\n".join(o), need=(("S",i),), frees=(("S",i),))
    def strip_pub():
        AA(f"""s_waitcnt lgkmcnt(0)
        s_and_b32 s{sA}, s{sE}, 0x7f7f7f7f
        s_add_u32 s{sA}, s{sA}, 0x2f573b1d
        s_and_b32 s{sB}, s{sE}, 0x80808080
        s_xor_b32 s{sTAG}, s{sA}, s{sB}
        s_and_b32 s{sT}, s{sTAG}, 0xff
        s_bfe_u32 s{sT+1}, s{sTAG}, 0x80008
        s_bfe_u32 s{sT+2}, s{sTAG}, 0x80010
        s_lshr_b32 s{sT+3}, s{sTAG}, 24
        s_lshl_b32 s{sA}, s{sWV}, 10
        v_add_u32 v{vA1}, s{sA}, v{vA2}
        ds_write_b128 v{vA1}, {v(ACC,4)}
        s_waitcnt lgkmcnt(0)
        s_barrier
        s_cmp_eq_u32 s{sWV}, 3
        s_cbranch_scc0 L_nostrip
        s_cmp_ge_u32 s2, 208
        s_cbranch_scc1 L_nostrip
        v_and_b32 v{T}, 1, v{vL}
        v_bfe_u32 v{T+1}, v{vL}, 1, 3
        v_lshlrev_b32 v{T}, 8, v{T}
        v_lshl_add_u32 v{T}, v{T+1}, 4, v{T}""")
        for p in range(4):
            A(f"ds_read_b128 {v(S+8*p,4)}, v{T} offset:{p*1024}")
            A(f"ds_read_b128 {v(S+8*p+4,4)}, v{T} offset:{p*1024+640}")
        AA(f"""s_lshl_b32 s{sA}, s{sSO}, 8
        s_add_u32 s{sA}, s{sA}, {WS_QGU}
        s_waitcnt lgkmcnt(0)""")
        for st in (4,8,16):
            for b in range(0,32,2*st):
                for k in (0,2):
                    A(f"v_pk_add_f32 {v(S+b+k,2)}, {v(S+b+k,2)}, {v(S+b+st+k,2)}")
        AA(f"""v_cvt_pk_bf16_f32 v{S+4}, v{S}, v{S+1}
        v_cvt_pk_bf16_f32 v{S+5}, v{S+2}, v{S+3}
        v_lshl_or_b32 v{S}, v{S+4}, 16, s{sT}
        v_and_b32 v{S+1}, 0xffff0000, v{S+4}
        v_lshl_or_b32 v{S+2}, v{S+5}, 16, s{sT+2}
        v_and_b32 v{S+3}, 0xffff0000, v{S+5}
        v_or_b32 v{S+1}, s{sT+1}, v{S+1}
        v_or_b32 v{S+3}, s{sT+3}, v{S+3}
        s_mov_b64 exec, 0xffff
        buffer_store_dwordx4 {v(S,4)}, v{vA2}, {s(rWS,4)}, s{sA} offen sc1
        s_mov_b64 exec, -1
        L_nostrip:""")
        stamp(1)
    task(strip_pub, cost=40)

    def check(regs, tags, acc, mask):
        o = [f"v_xor_b32 v{r}, {t}, v{r}" for r,t in zip(regs,tags)]
        rs = list(regs)
        o.append(f"v_or3_b32 v{acc}, v{rs[0]}, v{rs[1]}, v{rs[2]}"); rs = rs[3:]
        while len(rs)>=2:
            o.append(f"v_or3_b32 v{acc}, v{acc}, v{rs[0]}, v{rs[1]}"); rs = rs[2:]
        if rs: o.append(f"v_or_b32 v{acc}, v{acc}, v{rs[0]}")
        o += [f"v_and_b32 v{acc}, {mask}, v{acc}", f"v_cmp_ne_u32 vcc, 0, v{acc}"]
        return o
    def poll_pair(tagname, pre, lds_, regs, tags, acc, mask, minstep):
        def fissue():
            for x in pre: A(x)
            for x in lds_: ids[tagname] = vm.issue(x)
        task(fissue, minstep=minstep, cost=len(pre)+len(lds_))
        def fcheck():
            A(f"s_mov_b32 s{sCNT}, 0")
            A(f"L_{tagname}_chk:")
            for x in check(regs,tags,acc,mask): A(x)
            A(f"s_cbranch_vccnz L_{tagname}_retry")
            A(f"L_{tagname}_ok:")
            OUTL.extend([f"L_{tagname}_retry:", f"s_add_u32 s{sCNT}, s{sCNT}, 1", f"s_cmp_ge_u32 s{sCNT}, {SPIN}", f"s_cbranch_scc1 L_{tagname}_ok"]
                        + lds_ + ["s_waitcnt vmcnt(0)", f"s_branch L_{tagname}_chk"])
        return fcheck
    tg4 = [f"s{sT+k}" for k in range(4)]
    pre = [f"v_and_b32 v{vA1}, 15, v{vL}", f"v_lshlrev_b32 v{vA1}, 5, v{vA1}", f"v_and_b32 v{vST}, 8, v{vL}",
           f"v_lshl_add_u32 v{vA1}, v{vST}, 6, v{vA1}", f"v_xor_b32 v{vST}, 0x200, v{vA1}",
           f"s_lshl_b32 s{sSO}, s{sH}, 10", f"s_add_u32 s{sSO}, s{sSO}, {WS_QGU}"]
    lq = [f"buffer_load_dwordx4 {v(T,4)}, v{vA1}, {s(rWS,4)}, s{sSO} offen sc1",
          f"buffer_load_dwordx4 {v(T+4,4)}, v{vA1}, {s(rWS,4)}, s{sSO} offen offset:16 sc1",
          f"buffer_load_dwordx4 {v(T+8,4)}, v{vST}, {s(rWS,4)}, s{sSO} offen sc1",
          f"buffer_load_dwordx4 {v(T+12,4)}, v{vST}, {s(rWS,4)}, s{sSO} offen offset:16 sc1"]
    fc = poll_pair("q", pre, lq, list(range(T,T+16)), tg4*4, PT, "0xffff", 18+P-D+3)
    def fq():
        fc()
        A(f"s_mov_b32 s{sA}, 0x07060302")
        for k in range(8): A(f"v_perm_b32 v{Q+k}, v{T+2*k+1}, v{T+2*k}, s{sA}")
        A(f"v_mov_b32 v{vMX}, 0xff800000")
        stamp(2)
    task(fq, need=("q",), cost=40)
    SC = hex(f2u(128**-0.5))
    def kdots(n):
        o=[]; kt = KT+4*(n&1)
        r0 = slot(lpos[("K",2*n)]); r1 = slot(lpos[("K",2*n+1)])
        for k in range(4):
            for (acc,r,q) in ((kt,r0,Q),(kt+1,r0,Q+4),(kt+2,r1,Q),(kt+3,r1,Q+4)):
                o.append(f"v_dot2_f32_bf16 v{acc}, v{r+k}, v{q+k}, 0" if k==0 else f"v_dot2c_f32_bf16 v{acc}, v{r+k}, v{q+k}")
        return o
    def kpost(n):
        kt = KT+4*(n&1); a,b = kt,kt+2
        o=[]
        o += [f"v_add_f32_dpp v{x}, v{x+1}, v{x} row_ror:8 row_mask:0xf bank_mask:0xf" for x in (a,b)]
        for md in ("quad_perm:[1,0,3,2]","quad_perm:[2,3,0,1]","row_half_mirror"):
            o += [f"v_add_f32_dpp v{x}, v{x}, v{x} {md} row_mask:0xf bank_mask:0xf" for x in (a,b)]
        o += [f"v_cvt_pk_bf16_f32 v{a+1}, v{a}, v{b}", f"v_max3_f32 v{vMX}, v{vMX}, v{a}, v{b}",
              f"v_lshlrev_b32 v{a}, 16, v{a+1}", f"v_and_b32 v{b}, 0xffff0000, v{a+1}",
              f"v_mul_f32 v{a}, {SC}, v{a}", f"v_mul_f32 v{b}, {SC}, v{b}", f"v_cvt_pk_bf16_f32 v{S+n}, v{a}, v{b}"]
        return o
    for n in range(32):
        d = kdots(n)
        o = d if n==0 else d[:2]+merge(d[2:], kpost(n-1))
        task("\n".join(o), need=(("K",2*n),("K",2*n+1)), frees=(("K",2*n),("K",2*n+1)))
    LOG2E = hex(f2u(1.4426950408889634))
    o = kpost(31) + allreduce("v_max_f32", vMX, PT, rows=False) + bfr(vMX,vMX) + [f"v_mul_f32 v{vMX}, {SC}, v{vMX}"] + bfr(vMX,vMX)
    o += [f"v_mov_b32 v{vSL}, 0", f"v_mov_b32 v{PT+3}, 0"]
    task("\n".join(o))
    for n in range(0,32,2):
        o1=[];o2=[]
        for (oo,nn,a) in ((o1,n,KT),(o2,n+1,KT+2)):
            oo += [f"v_lshlrev_b32 v{a}, 16, v{S+nn}", f"v_and_b32 v{a+1}, 0xffff0000, v{S+nn}",
                   f"v_sub_f32 v{a}, v{a}, v{vMX}", f"v_sub_f32 v{a+1}, v{a+1}, v{vMX}",
                   f"v_mul_f32 v{a}, {LOG2E}, v{a}", f"v_mul_f32 v{a+1}, {LOG2E}, v{a+1}",
                   f"v_exp_f32 v{a}, v{a}", f"v_exp_f32 v{a+1}, v{a+1}",
                   f"v_add_f32 v{vSL}, v{vSL}, v{a}", f"v_add_f32 v{PT+3}, v{PT+3}, v{a+1}",
                   f"v_cvt_pk_bf16_f32 v{S+nn}, v{a}, v{a+1}"]
        task("\n".join(merge(o1,o2)), cost=26)
    def ml_pub():
        o = [f"v_add_f32 v{vSL}, v{vSL}, v{PT+3}"] + allreduce("v_add_f32", vSL, PT, rows=False)
        o += [f"v_readlane_b32 s{sM0}, v{vMX}, 0", f"v_readlane_b32 s{sM1}, v{vMX}, 8",
              f"v_mov_b32_dpp v{PT+3}, v{vSL} row_ror:8 row_mask:0xf bank_mask:0xf",
              f"v_mov_b32_dpp v{PT+2}, v{vMX} row_ror:8 row_mask:0xf bank_mask:0xf",
              f"v_and_or_b32 v{PT}, v{vMX}, v{vMK}, s{sT}", f"v_and_or_b32 v{PT+1}, v{vSL}, v{vMK}, s{sT+1}",
              f"v_and_or_b32 v{PT+2}, v{PT+2}, v{vMK}, s{sT+2}", f"v_and_or_b32 v{PT+3}, v{PT+3}, v{vMK}, s{sT+3}",
              f"s_lshl_b32 s{sSO}, s{sH}, 10", f"s_add_u32 s{sSO}, s{sSO}, {WS_ML}",
              f"s_lshl_b32 s{sA}, s{sS}, 2", f"s_add_u32 s{sA}, s{sA}, s{sWV}", f"s_lshl_b32 s{sA}, s{sA}, 4", f"s_add_u32 s{sA}, s{sA}, s{sSO}",
              "s_mov_b64 exec, 1"]
        for x in o: A(x)
        vm.issue(f"buffer_store_dwordx4 {v(PT,4)}, v{vA2}, {s(rWS,4)}, s{sA} offen sc1")
        A("s_mov_b64 exec, -1")
        stamp(3)
    task(ml_pub, cost=30)
    task("\n".join(abuild(A0, S, 0)))
    def vtask(i):
        o = abuild(AB[(i+1)&1], S+(i+1)//2, (i+1)&1) if i<63 else []
        o = o[:2]+[mfma(ACC, AB[i&1], slot(lpos[("V",i)]), i==0)]+o[2:]
        task("\n".join(o), need=(("V",i),), frees=(("V",i),))
    def side_h(vi):
        pre = [f"v_lshrrev_b32 v{vST}, 3, v{vL}", f"v_lshlrev_b32 v{vA1}, 4, v{vST}", f"v_and_b32 v{vST}, 3, v{vST}",
               f"v_lshlrev_b32 v{HP}, 3, v{vST}", f"v_lshrrev_b32 v{HP}, v{HP}, s{sTAG}" , f"v_and_b32 v{HP}, 0xff, v{HP}",
               f"v_lshlrev_b32 v{vST}, 2, v{vST}",
               f"s_and_b32 s{sA}, s2, 127", f"s_mul_i32 s{sA}, s{sA}, 144", f"s_add_u32 s{sC}, s{sA}, {WS_QGU+64*256}", f"s_add_u32 s{sD_}, s{sA}, {WS_QGU+136*256}"]
        pre[4] = f"v_lshrrev_b32_e64 v{HP}, v{HP}, s{sTAG}"
        lh = [f"buffer_load_dwordx4 {v(T,4)}, v{vA1}, {s(rWS,4)}, s{sC} offen sc1",
              f"buffer_load_dwordx4 {v(T+8,4)}, v{vA1}, {s(rWS,4)}, s{sD_} offen sc1",
              f"buffer_load_dword v{T+4}, v{vST}, {s(rWS,4)}, s{sC} offen offset:128 sc1",
              f"buffer_load_dword v{T+12}, v{vST}, {s(rWS,4)}, s{sD_} offen offset:128 sc1"]
        regs = [T,T+1,T+2,T+3,T+4,T+8,T+9,T+10,T+11,T+12]
        fc = poll_pair("h", pre, lh, regs, tg4+[f"v{HP}"]+tg4+[f"v{HP}"], PT, "0xffff", 0)
        def later():
            task(fc, need=("h",), cost=20)
            ls=[]
            for k in range(5):
                g=T+k; t=KT+k
                ls.append([f"v_mul_f32 v{t}, {hex(f2u(-1.4426950408889634))}, v{g}", f"v_exp_f32 v{t}, v{t}", f"v_add_f32 v{t}, 1.0, v{t}",
                           f"v_rcp_f32 v{t}, v{t}", f"v_mul_f32 v{t}, v{g}, v{t}"] + bfr(t,t) + [f"v_mul_f32 v{t}, v{t}, v{T+8+k}"])
            o = merge(*ls) + [f"v_cvt_pk_bf16_f32 v{HP}, v{KT}, v{KT+1}", f"v_cvt_pk_bf16_f32 v{HP+1}, v{KT+2}, v{KT+3}", f"v_cvt_pk_bf16_f32 v{HP+2}, v{KT+4}, v{KT+4}"]
            split_task(o, 22)
        return later
    def side_ml(vi):
        lm = [f"buffer_load_dwordx4 {v(T,4)}, v{vA2}, {s(rWS,4)}, s{sSO} offen sc1"]
        fc = poll_pair("ml", [], lm, [T,T+1,T+2,T+3], tg4, PT, "0xff", 0)
        def later():
            task(fc, need=("ml",), cost=12)
            M0,M1 = T+4,T+5
            o = [f"v_mov_b32 v{M0}, v{T}", f"v_mov_b32 v{M1}, v{T+2}"]
            o += merge(allreduce("v_max_f32",M0,T+6), allreduce("v_max_f32",M1,T+7))
            o += [f"v_sub_f32 v{T}, v{T}, v{M0}", f"v_sub_f32 v{T+2}, v{T+2}, v{M1}",
                  f"v_sub_f32 v{M0}, s{sM0}, v{M0}", f"v_sub_f32 v{M1}, s{sM1}, v{M1}",
                  f"v_mul_f32 v{T}, {LOG2E}, v{T}", f"v_mul_f32 v{T+2}, {LOG2E}, v{T+2}",
                  f"v_exp_f32 v{T}, v{T}", f"v_exp_f32 v{T+2}, v{T+2}", f"v_cmp_gt_u32 vcc, 32, v{vL}",
                  f"v_mul_f32 v{T}, v{T}, v{T+1}", f"v_mul_f32 v{T+2}, v{T+2}, v{T+3}",
                  f"v_cndmask_b32 v{M0}, v{M1}, v{M0}, vcc"]
            o += merge(allreduce("v_add_f32",T,T+6), allreduce("v_add_f32",T+2,T+7))
            o += [f"v_cmp_gt_u32 vcc, 32, v{vL}", f"v_mul_f32 v{M0}, {LOG2E}, v{M0}", f"v_exp_f32 v{M0}, v{M0}",
                  f"v_cndmask_b32 v{T}, v{T+2}, v{T}, vcc", f"v_rcp_f32 v{T}, v{T}", f"v_mul_f32 v{vFA}, v{M0}, v{T}"]
            split_task(o, 22)
        return later
    def side_late():
        def f():
            AA(f"""s_mul_i32 s{sA}, s2, {36*1152}
            s_lshl_b32 s{sB}, s{sH}, 3
            s_add_u32 s{sB}, s{sB}, s{sS}
            s_sub_u32 s{sB}, s{sB}, 8
            s_mul_i32 s{sB}, s{sB}, {32*1152}
            s_cmp_lt_u32 s2, 128
            s_cselect_b32 s{sA}, s{sA}, s{sB}
            s_cselect_b32 s{rLT}, s{pD}, s{pWO}
            s_cselect_b32 s{rLT+1}, s{pD+1}, s{pWO+1}
            s_mov_b32 s{rLT+2}, {4096*1152}
            s_cselect_b32 s{rLT+2}, {4608*1152}, s{rLT+2}
            s_mov_b32 s{rLT+3}, 0x20000
            s_mul_i32 s{sB}, s{sWV}, 384
            s_add_u32 s{sA}, s{sA}, s{sB}
            v_lshrrev_b32 v{T}, 3, v{vL}
            v_and_b32 v{T+1}, 7, v{vL}
            v_lshl_add_u32 v{T+2}, v{T+1}, 4, s{sA}
            v_mov_b32 v{T+3}, 4608
            v_mad_u32_u24 v{vST}, v{T}, v{T+3}, v{T+2}
            v_mov_b32 v{T+3}, 1152
            v_mad_u32_u24 v{vA1}, v{T}, v{T+3}, v{T+2}
            v_add_u32 v{vA1}, {32*1152}, v{vA1}
            v_cmp_gt_u32 vcc, 32, v{vL}
            v_mov_b32 v{T+3}, {OOB}
            v_cndmask_b32 v{vA1}, v{T+3}, v{vA1}, vcc""")
            srd(rO,pO,1152)
        task(f, cost=30)
    pend = {}
    for i in range(64):
        if i==hstep: pend[i+D+1] = side_h(i)
        if i==mlstep: pend[i+D+1] = side_ml(i)
        if i in pend: pend.pop(i)()
        if i==mlstep+D+2: side_late()
        vtask(i)
    assert not pend and hstep+D+1 < mlstep and mlstep+D+2 < 64-D-2

    state = dict(ti=0, freed=set())
    def needs_ok(t, vm_, force):
        for nd in t["need"]:
            i = ids[nd] if nd in ids else lid.get(nd)
            if i is None:
                assert not force, nd
                return False
            if i > vm_.done:
                if force: vm_.wait(i)
                else: return False
        return True
    def run_tasks(step, bud, until=None):
        while state["ti"] < len(tasks):
            t = tasks[state["ti"]]
            force = until is not None and until not in state["freed"]
            if not force:
                if bud <= 0 or t["minstep"] > step or not needs_ok(t, vm, False): break
            else:
                needs_ok(t, vm, True)
            t["fn"](); bud -= t["cost"]; state["ti"] += 1
            state["freed"].update(t["frees"])
    for n in range(len(loads)):
        if n >= R: run_tasks(n, 0, until=loads[n-R])
        vm.pace((De+5 if n < De else De) if n<18 else D)
        issue_load(n)
        run_tasks(n, budget)
    rest = tasks[state["ti"]:]
    assert all(len(t["frees"])==1 and t["frees"][0][0]=="V" for t in rest), "side jobs left in tail"
    stamp(4)
    NL = len(loads)
    vm0 = vm
    AA(f"""s_cmp_eq_u32 s{sWV}, 3
    s_cbranch_scc1 L_tail_w3
    s_cmp_lt_u32 s2, 128
    s_cbranch_scc1 L_tail_down""")
    def scale(): return [f"v_mul_f32 v{ACC+k}, v{ACC+k}, v{vFA}" for k in range(4)]
    def tail_late(role):
        vm = vm0.clone()
        ll = [(g,b) for g in range(4) for b in range(3)] + ([(4,b) for b in range(3)] if role=="down" else [])
        freed = set(state["freed"])
        lidl = {}
        k = [0]
        def issue_late():
            g,b = ll[k[0]]; n = NL+k[0]
            assert loads[n-R] in freed
            va,off = (vST, g*1152+b*128) if g<4 else (vA1, b*128)
            lidl[(g,b)] = (vm.issue(f"buffer_load_dwordx4 {v(slot(n),4)}, v{va}, {s(rLT,4)}, 0 offen offset:{off} {ntf}"), slot(n))
            k[0]+=1
        def fill():
            while k[0] < len(ll) and vm.n - vm.done < Dl: issue_late()
        fill()
        for t in rest:
            vm.wait(lid[t["need"][0]]); fill(); t["fn"](); freed.update(t["frees"])
        P2V = KT; t0,t1,t2 = KT+1,KT+2,KT+3
        AA(f"""s_lshl_b32 s{sA}, s{sWV}, 10
        v_add_u32 v{t0}, s{sA}, v{vA2}""")
        for x in scale(): A(x)
        AA(f"""ds_write_b128 v{t0}, {v(ACC,4)} offset:4096
        s_waitcnt lgkmcnt(0)
        s_barrier""")
        while k[0] < len(ll):
            vm.pace(Dl); issue_late()
        p2 = f"""v_lshrrev_b32 v{t0}, 5, v{vL}
        v_bfe_u32 v{t1}, v{vL}, 3, 1
        v_lshl_or_b32 v{t0}, v{t1}, 1, v{t0}
        v_bfe_u32 v{t1}, v{vL}, 2, 1
        v_lshl_or_b32 v{t1}, v{t0}, 1, v{t1}
        v_cmp_gt_u32 vcc, 3, v{t0}
        v_and_b32 v{t0}, 3, v{vL}
        v_lshlrev_b32 v{t0}, 5, v{t0}
        v_and_or_b32 v{t0}, v{vL}, 16, v{t0}
        v_lshl_or_b32 v{t0}, v{t1}, 15, v{t0}
        v_mov_b32 v{t1}, {OOB}
        s_mul_i32 s{sA}, s{sWV}, {6*32768}
        s_lshl_b32 s{sB}, s2, 7
        s_add_u32 s{sA}, s{sA}, s{sB}
        s_add_u32 s{sA}, s{sA}, {WS_P2}
        v_cndmask_b32 v{P2V}, v{t1}, v{t0}, vcc"""
        if role=="wo":
            lo = [f"buffer_load_dwordx4 {v(T,4)}, v{vA1}, {s(rWS,4)}, s{sC} offen sc1",
                  f"buffer_load_dwordx4 {v(T+4,4)}, v{vA1}, {s(rWS,4)}, s{sD_} offen sc1"]
            AA(f"""v_and_b32 v{t0}, 7, v{vL}
            v_lshlrev_b32 v{t0}, 10, v{t0}
            v_lshrrev_b32 v{t1}, 3, v{vL}
            v_lshl_add_u32 v{vA1}, v{t1}, 4, v{t0}
            s_lshl_b32 s{sC}, s{sH}, 14
            s_lshl_b32 s{sD_}, s{sS}, 7
            s_add_u32 s{sC}, s{sC}, s{sD_}
            s_add_u32 s{sC}, s{sC}, {WS_OP-8*128}
            s_add_u32 s{sD_}, s{sC}, 8192
            s_mov_b32 s{sCNT}, 0""")
            for x in lo: A(x)
            AA(p2)
            AA(f"""s_branch L_o_wait
            L_o_retry:
            s_add_u32 s{sCNT}, s{sCNT}, 1
            s_cmp_ge_u32 s{sCNT}, {SPIN}
            s_cbranch_scc1 L_o_ok""")
            for x in lo: A(x)
            A("L_o_wait:")
            vm.drain()
            for x in check(list(range(T,T+8)), tg4*2, PT, "0xff"): A(x)
            AA(f"""v_pk_add_f32 {v(T,2)}, {v(T,2)}, {v(T+4,2)}
            v_pk_add_f32 {v(T+2,2)}, {v(T+2,2)}, {v(T+6,2)}
            s_cbranch_vccnz L_o_retry
            L_o_ok:""")
            for md in ("quad_perm:[1,0,3,2]","quad_perm:[2,3,0,1]","row_half_mirror"):
                for x in range(T,T+4): A(f"v_add_f32_dpp v{x}, v{x}, v{x} {md} row_mask:0xf bank_mask:0xf")
            AA(f"""v_cvt_pk_bf16_f32 v{HP}, v{T}, v{T+1}
            v_cvt_pk_bf16_f32 v{HP+1}, v{T+2}, v{T+3}""")
        else:
            AA(p2)
        ng = 5 if role=="down" else 4
        for x in abuild(A0, HP, 0): A(x)
        for g in range(ng):
            nx = abuild(AB[(g+1)&1], HP+(g+1)//2, (g+1)&1) if g+1<ng else []
            for b in range(3):
                i,r = lidl[(g,b)]
                if b==0 and nx: A(nx.pop(0)); A(nx.pop(0))
                vm.wait(i)
                A(mfma(LACC+4*b, AB[g&1], r, g==0))
                if nx: A(nx.pop(0))
        for k2 in range(4): A(f"v_permlane32_swap_b32 v{LACC+k2}, v{LACC+4+k2}")
        for k2 in range(4): A(f"v_permlane32_swap_b32 v{LACC+8+k2}, v{T+8+k2}")
        for k2 in range(4): A(f"v_add_f32_dpp v{LACC+k2}, v{LACC+4+k2}, v{LACC+k2} row_ror:8 row_mask:0xf bank_mask:0xf")
        for k2 in range(4): A(f"v_add_f32_dpp v{LACC+k2}, v{LACC+8+k2}, v{T+8+k2} row_ror:8 row_mask:0xf bank_mask:0xc")
        for k2 in range(4): A(f"v_and_or_b32 v{LACC+k2}, v{LACC+k2}, v{vMK}, s{sT+k2}")
        A(f"buffer_store_dwordx4 {v(LACC,4)}, v{P2V}, {s(rWS,4)}, s{sA} offen sc1")
        stamp(5)
        A("s_branch L_fin")
    tail_late("wo")
    A("L_tail_down:")
    tail_late("down")
    A("L_tail_w3:")
    vm = vm0.clone()
    XV = KT+4; OV = KT+5; CV = KT+6; PV = KT+7
    AA(f"""s_and_b32 s{sA}, s2, 7
    s_lshr_b32 s{sB}, s2, 6
    s_lshl_b32 s{sB}, s{sB}, 3
    s_add_u32 s{sM0}, s{sA}, s{sB}
    s_bfe_u32 s{sB}, s2, 0x30003
    s_lshl_b32 s{sC}, s{sM0}, 6
    s_lshl_b32 s{sD_}, s{sB}, 3
    s_add_u32 s{sC}, s{sC}, s{sD_}
    v_bfe_u32 v{KT}, v{vL}, 3, 1
    v_bfe_u32 v{KT+1}, v{vL}, 4, 1
    v_lshl_or_b32 v{KT}, v{KT}, 1, v{KT+1}
    v_lshl_add_u32 v{OV}, v{KT}, 1, s{sC}""")
    ix = vm.issue(f"buffer_load_ushort v{XV}, v{OV}, {s(rX,4)}, 0 offen")
    AA(f"""s_lshl_b32 s{sC}, s{sM0}, 15
    s_lshl_b32 s{sD_}, s{sB}, 4
    s_add_u32 s{sC}, s{sC}, s{sD_}
    s_add_u32 s{sC}, s{sC}, {WS_P2}
    v_lshl_add_u32 v{CV}, v{vL}, 7, s{sC}
    v_and_b32 v{KT}, 15, v{vL}
    v_lshlrev_b32 v{KT}, 5, v{KT}
    v_and_or_b32 v{KT}, v{vL}, 16, v{KT}
    v_lshrrev_b32 v{KT+1}, 5, v{vL}
    v_lshl_or_b32 v{PV}, v{KT+1}, 9, v{KT}
    s_lshl_b32 s{sA}, s{sH}, 4
    s_add_u32 s{sA}, s{sA}, s{sS}
    s_lshl_b32 s{sA}, s{sA}, 10
    s_add_u32 s{sA}, s{sA}, {WS_OP}
    s_mov_b32 s{sB}, 8192
    s_mov_b32 s{sC}, 16384
    s_mov_b32 s{sD_}, 24576""")
    for t in rest:
        vm.wait(lid[t["need"][0]]); t["fn"]()
    for x in scale(): A(x)
    if stamps: A("s_waitcnt lgkmcnt(0)")
    A("s_barrier")
    for p in range(3): A(f"ds_read_b128 {v(T+4*p,4)}, v{vA2} offset:{4096+p*1024}")
    A("s_waitcnt lgkmcnt(1)")
    for k2 in (0,2): A(f"v_pk_add_f32 {v(T+k2,2)}, {v(T+k2,2)}, {v(T+4+k2,2)}")
    A("s_waitcnt lgkmcnt(0)")
    for k2 in (0,2): A(f"v_pk_add_f32 {v(ACC+k2,2)}, {v(T+8+k2,2)}, {v(ACC+k2,2)}")
    for k2 in (0,2): A(f"v_pk_add_f32 {v(ACC+k2,2)}, {v(T+k2,2)}, {v(ACC+k2,2)}")
    for k2 in range(4): A(f"v_and_or_b32 v{ACC+k2}, v{ACC+k2}, v{vMK}, s{sT+k2}")
    A(f"buffer_store_dwordx4 {v(ACC,4)}, v{PV}, {s(rWS,4)}, s{sA} offen sc1")
    stamp(5)
    AA(f"""s_cmp_ge_u32 s{sM0}, 18
    s_cbranch_scc1 L_fin
    s_mov_b32 s{sCNT}, 0
    L_f_retry:
    s_add_u32 s{sCNT}, s{sCNT}, 1
    s_cmp_ge_u32 s{sCNT}, {SPIN}
    s_cbranch_scc1 L_f_ok""")
    for k2,so in enumerate(["0",f"s{sB}",f"s{sC}",f"s{sD_}"]):
        A(f"buffer_load_dwordx4 {v(T+4*k2,4)}, v{CV}, {s(rWS,4)}, {so} offen sc1")
    A("s_waitcnt vmcnt(0)")
    for x in check(list(range(T,T+16)), tg4*4, PT, "0xff"): A(x)
    for b in (0,8):
        for k2 in (0,2): A(f"v_pk_add_f32 {v(T+b+k2,2)}, {v(T+b+k2,2)}, {v(T+b+4+k2,2)}")
    AA(f"""s_cbranch_vccnz L_f_retry
    L_f_ok:""")
    for k2 in range(4): A(f"v_permlane32_swap_b32 v{T+k2}, v{T+8+k2}")
    for k2 in (0,2): A(f"v_pk_add_f32 {v(T+k2,2)}, {v(T+k2,2)}, {v(T+8+k2,2)}")
    AA(f"""v_lshlrev_b32 v{XV}, 16, v{XV}
    v_permlane16_swap_b32 v{T}, v{T+1}
    v_permlane16_swap_b32 v{T+2}, v{T+3}
    v_add_f32 v{T}, v{T}, v{T+1}
    v_add_f32 v{T+2}, v{T+2}, v{T+3}
    v_add_f32_dpp v{T}, v{T}, v{T} row_ror:8 row_mask:0xf bank_mask:0x3
    v_add_f32_dpp v{T}, v{T+2}, v{T+2} row_ror:8 row_mask:0xf bank_mask:0xc
    v_add_f32_dpp v{T}, v{T}, v{T} quad_perm:[1,0,3,2] row_mask:0xf bank_mask:0xf
    v_add_f32_dpp v{T}, v{T}, v{T} quad_perm:[2,3,0,1] row_mask:0xf bank_mask:0xf
    v_add_f32_dpp v{T}, v{T}, v{T} row_half_mirror row_mask:0xf bank_mask:0xf
    v_cvt_pk_bf16_f32 v{T}, v{T}, v{T}
    v_and_b32 v{T}, 0xffff0000, v{T}
    v_permlane32_swap_b32 v{T}, v{T+1}
    v_add_f32 v{T+1}, v{XV}, v{T+1}
    v_cvt_pk_bf16_f32 v{T+1}, v{T+1}, v{T+1}
    v_and_b32 v{T+1}, 0xffff0000, v{T+1}
    v_add_f32 v{T}, v{T}, v{T+1}
    v_cvt_pk_bf16_f32 v{T}, v{T}, v{T}
    s_mov_b64 exec, 0x01010101
    buffer_store_short v{T}, v{OV}, {s(rO,4)}, 0 offen {outflags}
    s_cmp_eq_u32 s2, 0
    s_cbranch_scc0 L_fin
    v_mov_b32 v{T+1}, s{sTAG}
    s_mov_b64 exec, 1
    buffer_store_dword v{T+1}, v{vA2}, {s(rWS,4)}, 0 offen sc1""")
    A("L_fin:")
    if dbg:
        AA(f"""s_memrealtime s[88:89]
        s_waitcnt lgkmcnt(0)
        s_cmp_eq_u32 s{sWV}, 3
        s_cbranch_scc0 L_nodbg
        s_cmp_lt_u32 s2, 8
        s_cbranch_scc0 L_nodbg
        s_mov_b64 exec, 1
        s_sub_u32 s88, s88, s92
        s_lshl_b32 s{sA}, s2, 2
        v_mov_b32 v{KT}, s{sA}
        v_mov_b32 v{KT+1}, s88
        v_mov_b32 v{KT+2}, s92
        v_and_b32 v{KT+2}, 0xffff, v{KT+2}
        global_store_dword v{KT}, v{KT+1}, {s(pDBG,2)}
        global_store_dword v{KT}, v{KT+2}, {s(pDBG,2)} offset:32
        L_nodbg:""")
    if spin_us:
        if spin_wg is not None: AA(f"s_cmp_eq_u32 s2, {spin_wg}\ns_cbranch_scc0 L_end")
        AA(f"""L_spin:
        s_memrealtime s[88:89]
        s_waitcnt lgkmcnt(0)
        s_sub_u32 s88, s88, s92
        s_cmp_lt_u32 s88, {spin_us*100}
        s_cbranch_scc1 L_spin""")
    if stamps:
        AA(f"""s_memrealtime s[88:89]
        s_getreg_b32 s90, hwreg(HW_REG_XCC_ID)
        s_waitcnt lgkmcnt(0)
        s_mov_b64 exec, 1
        s_add_u32 s{pWS}, s{pWS}, 0x8000000
        s_addc_u32 s{pWS+1}, s{pWS+1}, 0
        s_lshl_b32 s{sA}, s2, 2
        s_add_u32 s{sA}, s{sA}, s{sWV}
        s_lshl_b32 s{sA}, s{sA}, 5
        v_mov_b32 v{KT}, s{sA}""")
        for k2 in range(6): A(f"v_mov_b32 v{S+k2}, s{sSTAMP+2*k2}")
        AA(f"""v_mov_b32 v{S+6}, s88
        v_mov_b32 v{S+7}, s90
        global_store_dwordx4 v{KT}, {v(S,4)}, {s(pWS,2)}
        global_store_dwordx4 v{KT}, {v(S+4,4)}, {s(pWS,2)} offset:16""")
    A("s_endpgm")
    for x in OUTL: A(x)
    A("L_end:")
    A("s_endpgm")
    body = pad(L)
    if extra_k is None:
        txt = HDR + f"; @launch grid=(256,1,1) block=(256,1,1) lds={lds}\n"
    else:
        m = f"; @launch kernel={name}_kernel grid=(256,1,1) block=(256,1,1) lds={lds}\n"
        e = f"; @launch kernel=nop_kernel grid=(8,1,1) block=(64,1,1) lds=0\n"
        txt = HDR + (e+m if extra_k=="pre" else m+e if extra_k=="post" else m)
        if extra_k!="only": body += [".p2align 8", ".type nop_kernel,@function", "nop_kernel:", "s_endpgm"]
    txt += f""".amdgcn_target "amdgcn-amd-amdhsa--gfx950"
.text
.globl {name}_kernel
.p2align 8
.type {name}_kernel,@function
"""
    txt += "\n".join(x if x.endswith(":") else "    "+x for x in body)
    txt += f"""
.section .rodata,"a"
.p2align 6
.amdhsa_kernel {name}_kernel
  .amdhsa_next_free_vgpr {NV}
  .amdhsa_next_free_sgpr 96
  .amdhsa_accum_offset {NV}
  .amdhsa_group_segment_fixed_size 0
  .amdhsa_kernarg_size 96
  .amdhsa_user_sgpr_count 2
  .amdhsa_user_sgpr_kernarg_segment_ptr 1
  .amdhsa_system_sgpr_workgroup_id_x 1
  .amdhsa_float_denorm_mode_32 3
.end_amdhsa_kernel
"""
    if extra_k in ("pre","post"):
        txt += """.p2align 6
.amdhsa_kernel nop_kernel
  .amdhsa_next_free_vgpr 8
  .amdhsa_next_free_sgpr 16
  .amdhsa_accum_offset 8
  .amdhsa_group_segment_fixed_size 0
  .amdhsa_kernarg_size 96
  .amdhsa_user_sgpr_count 2
  .amdhsa_user_sgpr_kernarg_segment_ptr 1
  .amdhsa_system_sgpr_workgroup_id_x 1
.end_amdhsa_kernel
"""
    open(path,"w").write(txt)

if __name__=="__main__":
    gen("v1.s")
    gen("v1_st.s", stamps=True)
    gen("x_spin35.s", spin_us=35)
    gen("x_spin35_w0.s", spin_us=35, spin_wg=0)
    gen("x_spin35_w255.s", spin_us=35, spin_wg=255)
    gen("x_spin35_lds8k.s", spin_us=35, lds=8192)
    gen("x_spin35_pre.s", spin_us=35, extra_k="pre")
    gen("x_spin35_post.s", spin_us=35, extra_k="post")
```
